```python
import torch

def _softmax(x, axis=-1):
    return torch.softmax(x, dim=axis)
def _gelu(x):
    return torch.nn.functional.gelu(x, approximate="tanh")
def _silu(x):
    return torch.nn.functional.silu(x)
def _sigmoid(x):
    return torch.sigmoid(x)
def _layernorm(x, axis=-1, eps=1e-5):
    m = x.mean(dim=axis, keepdim=True)
    v = x.var(dim=axis, keepdim=True, unbiased=False)
    return (x - m) / torch.sqrt(v + eps)
def _scatter_add(tgt, idx, src, axis=0):
    return tgt.clone().index_add_(axis, idx, src)
def _segment_sum(src, seg, n):
    out = torch.zeros((n,) + src.shape[1:], dtype=src.dtype)
    return out.index_add_(0, seg, src)
def _pad(x, pw):
    flat = tuple(v for pair in reversed(pw) for v in pair)
    return torch.nn.functional.pad(x, flat)

kernel_name = 'parallel_sum__grouped_kv_mqa__dense_activation_squared_relu__prompt'

def setup_inputs():

    _w = (lambda a: (lambda t: t.to(torch.bfloat16) if t.is_floating_point() else t)(torch.as_tensor(a)))
    def _A_setup():
        B, S, D, H = 1, 2048, 640, 32
        Dh = D // H
        return {
            "x": _w((lambda *s: torch.randn(*s, dtype=torch.bfloat16) * 0.05)(B, S, D)),
            "wq": _w((lambda *s: torch.randn(*s, dtype=torch.bfloat16) * 0.2)(D, H * Dh)),
            "wk": _w((lambda *s: torch.randn(*s, dtype=torch.bfloat16) * 0.2)(D, Dh)),
            "wv": _w((lambda *s: torch.randn(*s, dtype=torch.bfloat16) * 0.1)(D, Dh)),
            "wo": _w((lambda *s: torch.randn(*s, dtype=torch.bfloat16) * 0.1)(H * Dh, D)),
        }
    _A_in = _A_setup()

    def _B_setup():
        B, S, D, F = 1, 2048, 640, 1728
        return {
            "x": _w((lambda *s: torch.randn(*s, dtype=torch.bfloat16) * 0.05)(B, S, D)),
            "w1": _w((lambda *s: torch.randn(*s, dtype=torch.bfloat16) * 0.1)(D, F)),
            "b1": _w((lambda *s: torch.randn(*s, dtype=torch.bfloat16) * 0.4)(F)),
            "w2": _w((lambda *s: torch.randn(*s, dtype=torch.bfloat16) * 0.1)(F, D)),
            "b2": _w((lambda *s: torch.randn(*s, dtype=torch.bfloat16) * 12.8)(D)),
        }
    _B_in = _B_setup()

    return {
        "A_x": _A_in["x"],
        "A_wq": _A_in["wq"],
        "A_wk": _A_in["wk"],
        "A_wv": _A_in["wv"],
        "A_wo": _A_in["wo"],
        "B_x": _B_in["x"],
        "B_w1": _B_in["w1"],
        "B_b1": _B_in["b1"],
        "B_w2": _B_in["w2"],
        "B_b2": _B_in["b2"],
    }

def reference(A_x, A_wq, A_wk, A_wv, A_wo, B_x, B_w1, B_b1, B_w2, B_b2):
    def _A_ref(x, wq, wk, wv, wo):
        B, S, D = x.shape
        H = 32
        Dh = D // H
        q = (lambda x, *d: x.permute(*d))((x @ wq).reshape(B, S, H, Dh), 0, 2, 1, 3)
        k = x @ wk
        v = x @ wv
        scores = torch.einsum("bhqd,bkd->bhqk", q, k) * (Dh ** -0.5)
        p = _softmax(scores, axis=-1)
        o = torch.einsum("bhqk,bkd->bhqd", p, v)
        return (lambda x, *d: x.permute(*d))(o, 0, 2, 1, 3).reshape(B, S, H * Dh) @ wo

    def _B_ref(x, w1, b1, w2, b2):
        h = torch.einsum("bsd,df->bsf", x, w1) + b1
        zero = torch.zeros_like(h)
        r = torch.where(h > zero, h, zero)
        h = r * r
        out = torch.einsum("bsf,fd->bsd", h, w2) + b2
        return out

    x = A_x
    xn = _layernorm(x, axis=-1)
    return x + _A_ref(xn, A_wq, A_wk, A_wv, A_wo) + _B_ref(xn, B_w1, B_b1, B_w2, B_b2)
```

```python
from common import *

SLOT = 24576
STAGE_B = 8 * KV_TILE
FLAGS = 2 * SLOT
MERGE = FLAGS + 64
MERGE_W = 14 * 256
ATTN_LDS = MERGE + 8 * MERGE_W
BIAS = 64.0

PROF_OFF = 0xF00000
def gen_attn(name="attn_kernel", prof=False, X=()):
    a = Asm()
    def stamp(i):
        if prof:
            a(f"s_memtime s[{40+4*i}:{41+4*i}]")
            a(f"s_memrealtime s[{42+4*i}:{43+4*i}]")
            a("s_waitcnt lgkmcnt(0)")
    SA, SB, OA, OB, NA, NB = 16, 32, 48, 64, 80, 96
    QA1, QA2, QB1, QB2 = 112, 116, 120, 124
    K1, V0, V1, K2 = 128, 132, 136, 118
    IDX, aK1, aK2, aV, vD, LANE = 126, 127, 1, 2, 3, 4
    T0, T1, T2, T3, T4, T5 = 5, 6, 7, 8, 9, 10
    NV = 140
    sW, sKH, sRT32, sH0, sQ, sDsrc, sDm0, sMode, sCnt = 12, 13, 14, 15, 16, 17, 18, 19, 20
    sHI = 22
    a(f"""
    s_cmp_ge_u32 s2, 256
    s_cbranch_scc1 L_{name}_end
    s_load_dwordx2 s[4:5], s[0:1], {KA['ws']}
    v_lshrrev_b32 v{T0}, 6, v0
    v_and_b32 v{LANE}, 63, v0
    s_and_b32 s6, s2, 7
    s_lshr_b32 s7, s2, 3
    v_readfirstlane_b32 s{sW}, v{T0}
    s_lshl_b32 s6, s6, 2
    s_lshr_b32 s3, s7, 3
    s_add_u32 s6, s6, s3            ; rb
    s_and_b32 s7, s7, 7             ; j
    s_lshr_b32 s{sKH}, s{sW}, 2
    s_and_b32 s3, s{sW}, 1
    s_lshl_b32 s{sRT32}, s6, 1
    s_add_u32 s{sRT32}, s{sRT32}, s3
    s_lshl_b32 s{sH0}, s7, 2
    s_and_b32 s3, s{sW}, 2
    s_add_u32 s{sH0}, s{sH0}, s3
    s_mul_i32 s{sQ}, s{sRT32}, {QF_RT}
    s_mul_i32 s3, s{sH0}, 1280
    s_add_u32 s{sQ}, s{sQ}, s3
    s_mul_i32 s{sDm0}, s{sW}, 3072
    s_mov_b32 s{sHI}, 0
    s_mov_b32 s{sHI+1}, -1
    s_mov_b32 s{sMode}, 0
    v_lshlrev_b32 v{T1}, 3, v{LANE}
    v_lshlrev_b32 v{vD}, 4, v{LANE}
    s_waitcnt lgkmcnt(0)
    """)
    srd(a, 8, 4, WS_SIZE)
    stamp(0)
    assert QF_OFF == 0
    a(f"""
    buffer_load_dwordx2 v[{QA1}:{QA1+1}], v{T1}, s[8:11], s{sQ} offen
    buffer_load_dwordx2 v[{QA1+2}:{QA1+3}], v{T1}, s[8:11], s{sQ} offen offset:512
    buffer_load_dwordx2 v[{QA2}:{QA2+1}], v{T1}, s[8:11], s{sQ} offen offset:1024
    buffer_load_dwordx2 v[{QB1}:{QB1+1}], v{T1}, s[8:11], s{sQ} offen offset:1280
    buffer_load_dwordx2 v[{QB1+2}:{QB1+3}], v{T1}, s[8:11], s{sQ} offen offset:1792
    buffer_load_dwordx2 v[{QB2}:{QB2+1}], v{T1}, s[8:11], s{sQ} offen offset:2304
    """)
    a(f"""
    s_mul_i32 s3, s{sKH}, {4*KV_TILE}
    v_add_u32 v{aK1}, s3, v{vD}
    v_and_b32 v{T0}, 31, v{LANE}
    v_lshlrev_b32 v{aK2}, 3, v{T0}
    v_add_u32 v{aK2}, s3, v{aK2}
    v_min_u32 v{T2}, {20 if "ones" in X else 21}, v{T0}
    v_lshrrev_b32 v{T4}, 5, v{LANE}
    v_mov_b32 v{IDX}, 0xdddddddd
    v_lshlrev_b32 v{T2}, 4, v{T2}
    v_mul_u32_u24 v{T4}, {KV_VB}, v{T4}
    v_add3_u32 v{aV}, v{T2}, v{T4}, s3
    s_add_u32 s3, s3, {KV_V + 336 - KV_K2}
    v_mov_b32 v{T2}, s3
    """)
    if "k2dup" not in X: a(f"v_cndmask_b32 v{aK2}, v{aK2}, v{T2}, s[{sHI}:{sHI+1}]")
    def dma(slot)   :
        a(f"s_add_u32 m0, s{sDm0}, {slot*SLOT}")
        a("s_nop 0")
        for n in range(3):
            a(f"buffer_load_dwordx4 v{vD}, s[8:11], s{sDsrc} offen offset:{n*1024} lds")
        a(f"s_add_u32 s{sDsrc}, s{sDsrc}, {STAGE_B}")
    def rdK(slot, i, k1=K1, k2=K2):
        o = slot * SLOT + i * KV_TILE
        return [f"ds_read_b128 {vr(k1,4)}, v{aK1} offset:{o}", f"ds_read_b64 {vr(k2,2)}, v{aK2} offset:{o+KV_K2}"]
    def rdV(slot, i, s):
        o = slot * SLOT + i * KV_TILE + KV_V + s * 2 * KV_VB
        return [f"ds_read_b128 {vr(V1 if s else V0,4)}, v{aV} offset:{o}"]
    def qk(d, q1, q2, c, k1=K1, k2=K2):
        return [f"v_mfma_f32_32x32x16_bf16 {vr(d,16)}, {vr(k1,4)}, {vr(q1,4)}, {c}",
                f"v_mfma_f32_32x32x8_bf16 {vr(d,16)}, {vr(k2,2)}, {vr(q2,2)}, {vr(d,16)}"]
    def maxtree(m, d, first):
        if first:
            a(f"v_max3_f32 v{m}, v{d}, v{d+1}, v{d+2}")
            a(f"v_max_f32 v{m}, v{m}, v{d+3}")
            r = range(4, 16, 2)
        else:
            r = range(0, 16, 2)
        for i in r:
            a(f"v_max3_f32 v{m}, v{m}, v{d+i}, v{d+i+1}")
    def finish_max(m, N, bias):
        a(f"v_mov_b32 v{T2}, v{m}")
        a("s_nop 1")
        a(f"v_permlane32_swap_b32 v{m}, v{T2}")
        a("s_nop 1")
        a(f"v_max_f32 v{m}, v{m}, v{T2}")
        a(f"v_sub_f32 v{N}, {f32(-bias)}, v{m}")
        for i in range(1, 16):
            a(f"v_mov_b32 v{N+i}, v{N}")

    a(f"L_{name}_start:")
    a(f"s_add_u32 s{sDsrc}, s{sDm0}, {KV_OFF}")
    dma(0); dma(1)
    a("s_waitcnt vmcnt(3)")
    a(f"""
    s_mov_b64 exec, s[{sHI}:{sHI+1}]
    v_mov_b32 v{QA2}, 0
    v_mov_b32 v{QA2+1}, 0
    v_mov_b32 v{QB2}, 0
    v_mov_b32 v{QB2+1}, 0
    s_mov_b64 exec, -1
    s_barrier
    s_cmp_lg_u32 s{sMode}, 0
    s_cbranch_scc1 L_{name}_init
    """)
    for s in rdK(0, 0) + rdK(0, 1, V0, V1): a(s)
    a("s_waitcnt lgkmcnt(2)")
    for s in qk(SA, QA1, QA2, "0") + qk(SB, QB1, QB2, "0"): a(s)
    a("s_waitcnt lgkmcnt(0)")
    for s in qk(OA, QA1, QA2, "0", V0, V1) + qk(OB, QB1, QB2, "0", V0, V1): a(s)
    a("s_nop 7")
    maxtree(T0, SA, True); maxtree(T1, SB, True)
    a("s_nop 7")
    maxtree(T0, OA, False); maxtree(T1, OB, False)
    bias = 100.0 if 'bias100' in X else BIAS
    finish_max(T0, NA, bias); finish_max(T1, NB, bias)
    a(f"L_{name}_init:")
    for s in rdK(0, 0) + rdV(0, 0, 0): a(s)
    for i in range(16):
        a(f"v_mov_b32 v{OA+i}, 0"); a(f"v_mov_b32 v{OB+i}, 0")
    for i in range(8, 16): a(f"v_mov_b32 v{SB+i}, 0")
    for i in range(4): a(f"v_mov_b32 v{V1+i}, 0")
    a("s_waitcnt lgkmcnt(0)")
    for s in qk(SA, QA1, QA2, vr(NA, 16)): a(s)
    a(f"s_mov_b32 s{sCnt}, 0")
    a("s_nop 15")

    def unit(cur, nxt, Onow, Oprev, q1, q2, nm, pre_pv2=(), post_pv2=(), pre_qk=(), post_qk=(), pre_pv1=(), post_pv1=()):
        e = lambda i: a(f"v_exp_f32 v{cur+i}, v{cur+i}") if "noexp" not in X else (a("s_nop 1") if "nopexp" in X else None)
        def pv(O, V, P, part):
            if "nopv" in X: return
            if "pv16" in X:
                a(f"v_smfmac_f32_16x16x64_bf16 {vr(O+4*part,4)}, {vr(V,4)}, {vr(P,8)}, v{IDX}")
            elif "pvcvt" in X:
                if part == 0:
                    a(f"v_mfma_f32_32x32x16_bf16 {vr(O,16)}, {vr(V,4)}, {vr(P,4)}, {vr(O,16)}")
            elif part == 0:
                a(f"v_smfmac_f32_32x32x32_bf16 {vr(O,16)}, {vr(V,4)}, {vr(P,8)}, v{IDX}")
        def cv(i):
            if "pvcvt" in X:
                b = cur + (i // 8) * 8
                a(f"v_cvt_pk_bf16_f32 v{b + (i % 8)//2}, v{cur+i}, v{cur+i+1}")
        def qk16(i):
            a(f"v_mfma_f32_16x16x32_bf16 {vr(nxt+4*i,4)}, {vr(K1,4)}, {vr(q1,4)}, {vr(nm+4*i,4)}")
        e(0); e(1)
        for s in pre_pv2: a(s)
        pv(Oprev, V1, nxt+8, 0)
        e(2); cv(0)
        pv(Oprev, V1, nxt+8, 1)
        for s in post_pv2: a(s)
        e(3); e(4); cv(2)
        for s in pre_qk: a(s)
        m = qk(nxt, q1, q2, vr(nm, 16))
        if "qk16" in X:
            qk16(0); e(5); qk16(1); e(6); cv(4); qk16(2); e(7); qk16(3)
        else:
            if "noqk" not in X: a(m[0])
            e(5); e(6); cv(4); e(7)
            if "noqk" not in X and "noqkb" not in X: a(m[1])
        for s in post_qk:
            if callable(s): s()
            else: a(s)
        e(8); cv(6); e(9); e(10); cv(8); e(11)
        for s in pre_pv1: a(s)
        pv(Onow, V0, cur, 0)
        e(12); cv(10)
        pv(Onow, V0, cur, 1)
        for s in post_pv1: a(s)
        e(13); e(14); cv(12); e(15)
        if "pvcvt" in X: a("s_nop 0")
        cv(14)

    stamp(1)
    a(".p2align 6")
    a(f"L_{name}_loop:")
    for slot in range(2):
        for i in range(4):
            ns, ni = (slot, i + 1) if i < 3 else (1 - slot, 0)
            if i < 3:
                post = rdK(ns, ni)
            else:
                def boundary(slot=slot, ns=ns, ni=ni):
                    a("s_waitcnt vmcnt(0) lgkmcnt(0)")
                    a("s_barrier")
                    for s in rdK(ns, ni): a(s)
                    a(f"s_cmp_eq_u32 s{sCnt}, 3")
                    a(f"s_cbranch_scc1 L_{name}_nodma{slot}")
                    dma(slot)
                    a(f"L_{name}_nodma{slot}:")
                post = [boundary]
            unit(SA, SB, OA, OB, QB1, QB2, NB,
                 post_pv2=rdV(slot, i, 1), post_qk=post, pre_pv1=["s_waitcnt lgkmcnt(3)"] if i < 3 else [])
            unit(SB, SA, OB, OA, QA1, QA2, NA,
                 pre_pv2=["s_waitcnt lgkmcnt(2)"], pre_qk=["s_waitcnt lgkmcnt(0)"], post_pv1=rdV(ns, ni, 0))
    if "iterstamp" in X:
        a("s_memtime s[56:57]")
        a("s_memrealtime s[58:59]")
        a("s_waitcnt lgkmcnt(0)")
        for it in range(3):
            a(f"s_cmp_eq_u32 s{sCnt}, {it}")
            a(f"s_cselect_b64 s[{64+4*it}:{65+4*it}], s[56:57], s[{64+4*it}:{65+4*it}]")
            a(f"s_cselect_b64 s[{66+4*it}:{67+4*it}], s[58:59], s[{66+4*it}:{67+4*it}]")
    a(f"""
    s_add_u32 s{sCnt}, s{sCnt}, 1
    s_cmp_lt_u32 s{sCnt}, 4
    s_cbranch_scc1 L_{name}_loop
    s_nop 0
    v_smfmac_f32_32x32x32_bf16 {vr(OB,16)}, {vr(V1,4)}, {vr(SB+8,8)}, v{IDX}
    s_waitcnt lgkmcnt(0)
    s_nop 15
    """)
    stamp(2)
    vBad = T5
    a(f"v_mov_b32 v{vBad}, 0")
    for O in (OA, OB):
        a(f"v_mov_b32 v{O+12}, v{O+8}")
        a(f"v_mov_b32 v{O+13}, v{O+8}")
        a("s_nop 1")
        a(f"v_permlane32_swap_b32 v{O+13}, v{O+12}")
        a("s_nop 1")
        a(f"v_mul_f32 v{T0}, 0, v{O}")
        for i in range(1, 13):
            a(f"v_fma_f32 v{T0}, v{O+i}, 0, v{T0}")
        a(f"v_max3_f32 v{T1}, |v{O}|, |v{O+1}|, |v{O+2}|")
        a(f"v_max3_f32 v{T1}, v{T1}, |v{O+3}|, |v{O+4}|")
        a(f"v_max3_f32 v{T1}, v{T1}, |v{O+5}|, |v{O+6}|")
        a(f"v_max_f32_e64 v{T1}, v{T1}, |v{O+7}|")
        a(f"v_cmp_neq_f32 vcc, 0, v{T0}")
        a(f"s_mov_b64 s[24:25], vcc")
        a(f"v_cmp_ngt_f32 vcc, {f32(2.0**120)}, v{O+12}")
        a(f"s_or_b64 s[24:25], s[24:25], vcc")
        a(f"v_cmp_gt_f32 vcc, {f32(2.0**-100)}, v{T1}")
        a(f"s_or_b64 s[24:25], s[24:25], vcc")
        a(f"s_cmp_lg_u64 s[24:25], 0")
        a(f"s_cselect_b32 s3, 1, 0")
        a(f"v_or_b32 v{vBad}, s3, v{vBad}")
    a(f"s_cmp_eq_u32 s{sKH}, 0")
    a(f"s_cbranch_scc1 L_{name}_noswap")
    for i in range(13):
        a(f"v_swap_b32 v{OA+i}, v{OB+i}")
    a(f"v_swap_b32 v{NA}, v{NB}")
    a(f"s_add_u32 s{sH0}, s{sH0}, 1")
    a(f"L_{name}_noswap:")
    a(f"""
    v_mov_b32 v{OB+13}, v{NB}
    s_mul_i32 s3, s{sW}, {MERGE_W}
    s_xor_b32 s26, s{sW}, 4
    s_mul_i32 s26, s26, {MERGE_W}
    v_add_u32 v{T0}, s3, v{vD}
    v_add_u32 v{T1}, s26, v{vD}
    v_lshlrev_b32 v{T2}, 3, v{LANE}
    v_add_u32 v{T3}, s26, v{T2}
    v_add_u32 v{T2}, s3, v{T2}
    s_lshl_b32 s3, s{sW}, 2
    v_mov_b32 v{T4}, s3
    ds_write_b128 v{T0}, {vr(OB,4)} offset:{MERGE}
    ds_write_b128 v{T0}, {vr(OB+4,4)} offset:{MERGE+1024}
    ds_write_b128 v{T0}, {vr(OB+8,4)} offset:{MERGE+2048}
    ds_write_b64 v{T2}, {vr(OB+12,2)} offset:{MERGE+3072}
    ds_write_b32 v{T4}, v{vBad} offset:{FLAGS}
    v_mov_b32 v{T4}, 0
    s_waitcnt lgkmcnt(0)
    s_barrier
    ds_read_b128 {vr(SA,4)}, v{T4} offset:{FLAGS}
    ds_read_b128 {vr(SA+4,4)}, v{T4} offset:{FLAGS+16}
    ds_read_b128 {vr(OB,4)}, v{T1} offset:{MERGE}
    ds_read_b128 {vr(OB+4,4)}, v{T1} offset:{MERGE+1024}
    ds_read_b128 {vr(OB+8,4)}, v{T1} offset:{MERGE+2048}
    ds_read_b64 {vr(OB+12,2)}, v{T3} offset:{MERGE+3072}
    s_waitcnt lgkmcnt(4)
    v_or3_b32 v{SA}, v{SA}, v{SA+1}, v{SA+2}
    v_or3_b32 v{SA}, v{SA}, v{SA+3}, v{SA+4}
    v_or3_b32 v{SA}, v{SA}, v{SA+5}, v{SA+6}
    v_or_b32 v{SA}, v{SA}, v{SA+7}
    s_nop 1
    v_readfirstlane_b32 s3, v{SA}
    s_nop 1
    s_andn2_b32 s3, s3, s{sMode}
    s_cmp_lg_u32 s3, 0
    {"s_nop 0" if X else f"s_cbranch_scc1 L_{name}_exact"}
    s_waitcnt lgkmcnt(0)
    """)
    a(f"""
    v_log_f32 v{T0}, v{OA+12}
    v_log_f32 v{T1}, v{OB+12}
    s_nop 0
    v_sub_f32 v{T0}, v{T0}, v{NA}
    v_sub_f32 v{T1}, v{T1}, v{OB+13}
    v_max_f32 v{T0}, v{T0}, v{T1}
    v_add_f32 v{T1}, v{T0}, v{OB+13}
    v_add_f32 v{T0}, v{T0}, v{NA}
    v_exp_f32_e64 v{T0}, -v{T0}
    v_exp_f32_e64 v{T1}, -v{T1}
    s_nop 0
    v_mul_f32 v{T2}, v{T0}, v{OA+12}
    v_fmac_f32 v{T2}, v{T1}, v{OB+12}
    v_rcp_f32 v{T2}, v{T2}
    s_nop 0
    v_mul_f32 v{T0}, v{T0}, v{T2}
    v_mul_f32 v{T1}, v{T1}, v{T2}
    """)
    for i in range(12):
        a(f"v_mul_f32 v{OA+i}, v{T0}, v{OA+i}")
        a(f"v_fmac_f32 v{OA+i}, v{T1}, v{OB+i}")
    for i in range(6):
        a(f"v_cvt_pk_bf16_f32 v{SA+i}, v{OA+2*i}, v{OA+2*i+1}")
    a(f"""
    s_mul_i32 s3, s{sH0}, 5
    v_lshrrev_b32 v{T0}, 5, v{LANE}
    v_add_u32 v{T0}, s3, v{T0}
    v_and_b32 v{T4}, 31, v{LANE}
    v_lshlrev_b32 v{T4}, 4, v{T4}
    s_mul_i32 s26, s{sRT32}, {AF_RT}
    s_add_u32 s26, s26, {AF_OFF + 108*1024}
    """)
    for i in range(3):
        a(f"""
        v_lshrrev_b32 v{T1}, 2, v{T0}
        v_lshl_add_u32 v{T1}, v{T1}, 10, v{T4}
        v_and_b32 v{T2}, 1, v{T0}
        v_lshl_add_u32 v{T1}, v{T2}, 9, v{T1}
        v_and_b32 v{T2}, 2, v{T0}
        v_lshl_add_u32 v{T1}, v{T2}, 2, v{T1}
        """)
        if i == 2:
            a("s_mov_b32 exec_hi, 0")
        a(f"buffer_store_dwordx2 {vr(SA+2*i,2)}, v{T1}, s[8:11], s26 offen")
        a(f"v_add_u32 v{T0}, 2, v{T0}")
    if prof:
        a("s_waitcnt vmcnt(0)")
        stamp(3)
        a(f"s_lshl_b32 s3, s2, 3")
        a(f"s_add_u32 s3, s3, s{sW}")
        a(f"s_lshl_b32 s3, s3, 6")
        a(f"s_add_u32 s3, s3, {PROF_OFF}")
        a("s_mov_b64 exec, 1")
        if "iterstamp" in X:
            for i in range(4): a(f"s_mov_b32 s{40+i}, s{44+i}")
            for i in range(12): a(f"s_mov_b32 s{44+i}, s{64+i}")
        for i in range(16): a(f"v_mov_b32 v{SA+i}, s{40+i}")
        a(f"v_mov_b32 v{T0}, 0")
        for i in range(4): a(f"buffer_store_dwordx4 {vr(SA+4*i,4)}, v{T0}, s[8:11], s3 offen offset:{16*i}")
    a(f"s_branch L_{name}_end")
    a(f"L_{name}_exact:")
    a(f"s_sub_u32 s{sH0}, s{sH0}, s{sKH}")
    a(f"s_mov_b32 s{sMode}, 1")
    a(f"s_mov_b32 s{sCnt}, 0")
    a(f"s_add_u32 s{sDsrc}, s{sDm0}, {KV_OFF}")
    a(f"v_mov_b32 v{T0}, 0xff800000")
    a(f"v_mov_b32 v{T1}, 0xff800000")
    a(f"L_{name}_exloop:")
    a("s_waitcnt lgkmcnt(0)")
    a("s_barrier")
    dma(0)
    a("s_waitcnt vmcnt(0)")
    a("s_barrier")
    for i in range(4):
        for s in rdK(0, i): a(s)
        a("s_waitcnt lgkmcnt(0)")
        for s in qk(SA, QA1, QA2, "0") + qk(SB, QB1, QB2, "0"): a(s)
        a("s_nop 15")
        maxtree(T0, SA, False); maxtree(T1, SB, False)
    a(f"""
    s_add_u32 s{sCnt}, s{sCnt}, 1
    s_cmp_lt_u32 s{sCnt}, 8
    s_cbranch_scc1 L_{name}_exloop
    """)
    finish_max(T0, NA, 0.0); finish_max(T1, NB, 0.0)
    a("s_barrier")
    a(f"s_branch L_{name}_start")
    a(f"L_{name}_end:")
    a("s_endpgm")
    return kernel_head(name) + a.text() + kernel_desc(name, NV, 96), f"; @launch kernel={name} grid=(256,1,1) block=(512,1,1) lds={ATTN_LDS}"
```

```python
import sys
from common import *
import attn, gemm2, gemm1
def build(path, parts):
    launches = []; body = ""
    for p in parts:
        txt, launch = p
        launches.append(launch); body += txt
    hdr = open(f"cdna_kernels/{NAME}.s.ref").read().split("; Override launch")[0]
    out = hdr + "\n".join(launches) + "\n" + '.amdgcn_target "amdgcn-amd-amdhsa--gfx950"\n' + body
    open(path, "w").write(out)
if __name__ == "__main__":
    build("attn_only.s", [attn.gen_attn()])
    build("attn_prof.s", [attn.gen_attn(prof=True)])
    build("g2_only.s", [gemm2.gen_gemm2()])
    build("g1_only.s", [gemm1.gen_gemm1()])
    build("full.s", [gemm1.gen_gemm1(), attn.gen_attn(), gemm2.gen_gemm2()])
    build("g1_prof.s", [gemm1.gen_gemm1(prof=True)])
```

```python
NAME = "parallel_sum__grouped_kv_mqa__dense_activation_squared_relu__prompt"
S, D, H, DH, F = 2048, 640, 32, 20, 1728
KA = dict(x=0, wq=8, wk=16, wv=24, wo=32, bx=40, w1=48, b1=56, w2=64, b2=72, out=80, dbg=88, ws=96)
QF_OFF = 0x0
QF_RT = 40960
KV_OFF = 0x280000
KV_TILE = 2688
KV_K2 = 1024
KV_V = 1280
KV_VB = 352
AF_OFF = 0x2C0000
NKS = 148
AF_RT = NKS * 1024
WF_OFF = AF_OFF + 64 * AF_RT
WF_CT = NKS * 1024
FLAG_OFF = WF_OFF + 20 * WF_CT
STAT_OFF = FLAG_OFF + 4096
WS_END = STAT_OFF + 8192
WS_SIZE = 0x1000000
assert WS_END <= WS_SIZE

class Asm:
    def __init__(self):
        self.l = []
    def __call__(self, s):
        for line in s.split("\n"):
            line = line.strip()
            if line:
                self.l.append("  " + line if not line.endswith(":") else line)
    def text(self):
        return "\n".join(self.l) + "\n"

def vr(b, n=1):
    return f"v{b}" if n == 1 else f"v[{b}:{b+n-1}]"
def ar(b, n=1):
    return f"a{b}" if n == 1 else f"a[{b}:{b+n-1}]"
def sr(b, n=1):
    return f"s{b}" if n == 1 else f"s[{b}:{b+n-1}]"

def kernel_head(name):
    return f""".text
.globl {name}
.p2align 8
.type {name},@function
{name}:
"""
def kernel_desc(name, nvgpr, nsgpr, accum=None):
    if accum is None:
        accum = (nvgpr + 3) // 4 * 4
    return f""".section .rodata,"a"
.p2align 6
.amdhsa_kernel {name}
  .amdhsa_next_free_vgpr {nvgpr}
  .amdhsa_next_free_sgpr {nsgpr}
  .amdhsa_accum_offset {accum}
  .amdhsa_group_segment_fixed_size 0
  .amdhsa_kernarg_size 104
  .amdhsa_user_sgpr_count 2
  .amdhsa_user_sgpr_kernarg_segment_ptr 1
  .amdhsa_system_sgpr_workgroup_id_x 1
.end_amdhsa_kernel
"""
def srd(a, d, base, nbytes):
    a(f"s_mov_b32 s{d}, s{base}")
    a(f"s_mov_b32 s{d+1}, s{base+1}")
    a(f"s_mov_b32 s{d+2}, {nbytes:#x}")
    a(f"s_mov_b32 s{d+3}, 0x00020000")
import struct
def f32(x):
    return "0x%08x" % struct.unpack("<I", struct.pack("<f", x))[0]

PROF_OFF = 0xF00000
def mk_stamp(a, prof, base=64):
    def stamp(i):
        if prof:
            a(f"s_memtime s[{base+4*i}:{base+1+4*i}]")
            a(f"s_memrealtime s[{base+2+4*i}:{base+3+4*i}]")
            a("s_waitcnt lgkmcnt(0)")
    return stamp
def prof_store(a, sW, nw_log2, vtmp, base=64, n=4):
    a("s_waitcnt vmcnt(0)")
    a(f"s_memtime s[{base+4*(n-1)}:{base+1+4*(n-1)}]")
    a(f"s_memrealtime s[{base+2+4*(n-1)}:{base+3+4*(n-1)}]")
    a("s_waitcnt lgkmcnt(0)")
    a(f"s_lshl_b32 s3, s2, {nw_log2}")
    a(f"s_add_u32 s3, s3, s{sW}")
    a(f"s_lshl_b32 s3, s3, 7")
    a(f"s_add_u32 s3, s3, {PROF_OFF}")
    a("s_mov_b64 exec, 1")
    for i in range(4*n): a(f"v_mov_b32 v{vtmp+i}, s{base+i}")
    a(f"v_mov_b32 v{vtmp+4*n}, 0")
    for i in range(n): a(f"buffer_store_dwordx4 {vr(vtmp+4*i,4)}, v{vtmp+4*n}, s[8:11], s3 offen offset:{16*i}")
```

```python
from common import *
XSLOT = 16384
WBASE = 65536
WSLOT = 20480
SCR = WBASE + 4 * WSLOT
BIASA = SCR
CSA = SCR + 4096
STATA = SCR + 8192
G1_LDS = 163840
KVW_V = 26624
QSCALE = DH ** -0.5 * 1.4426950408889634
OOB = 0x40000000

class Cnt:
    def __init__(self, a, kind, mx):
        self.a, self.kind, self.mx = a, kind, mx
        self.q = []
    def issue(self, tag): self.q.append(tag)
    def need(self, tag):
        idx = [i for i, t in enumerate(self.q) if t == tag]
        if not idx: return
        n = len(self.q) - 1 - idx[-1]
        self.a(f"s_waitcnt {self.kind}({min(n, self.mx)})")
        self.q = self.q[len(self.q) - min(n, self.mx):] if min(n, self.mx) else []
    def drain(self):
        self.a(f"s_waitcnt {self.kind}(0)"); self.q = []

def gen_gemm1(name="gemm1_kernel", prefetch=True, prof=False):
    a = Asm()
    stamp = mk_stamp(a, prof)
    LANE, T0, T1, T2, T3, T4 = 1, 2, 3, 4, 5, 6
    NV = 144
    sW, sRB, sJ, sLW, sStride, sCol, sXo, sWo, sSlotX, sSlotW, sCnt, sWstep = 12, 13, 14, 15, 16, 17, 18, 19, 20, 21, 22, 23
    sHI = 24
    a(f"""
    s_cmp_ge_u32 s2, 256
    s_cbranch_scc1 L_{name}_end
    s_load_dwordx8 s[44:51], s[0:1], 0
    s_load_dwordx2 s[52:53], s[0:1], {KA['wo']}
    s_load_dwordx4 s[56:59], s[0:1], {KA['w1']}  ; w1, b1
    s_load_dwordx2 s[54:55], s[0:1], {KA['w2']}
    s_load_dwordx2 s[4:5], s[0:1], {KA['ws']}
    v_lshrrev_b32 v{T0}, 6, v0
    v_and_b32 v{LANE}, 63, v0
    s_and_b32 s6, s2, 7
    s_lshr_b32 s7, s2, 3
    v_readfirstlane_b32 s{sW}, v{T0}
    s_lshr_b32 s3, s6, 1
    s_lshl_b32 s3, s3, 2
    s_lshr_b32 s{sRB}, s7, 3
    s_add_u32 s{sRB}, s{sRB}, s3
    s_and_b32 s3, s6, 1
    s_lshl_b32 s3, s3, 3
    s_and_b32 s{sJ}, s7, 7
    s_add_u32 s{sJ}, s{sJ}, s3
    s_and_b32 s{sLW}, s{sW}, 3
    s_mov_b32 s{sHI}, 0
    s_mov_b32 s{sHI+1}, -1
    s_mul_i32 s{sXo}, s{sRB}, {128*1280}
    s_mov_b32 s{sCnt}, 0
    s_waitcnt lgkmcnt(0)
    """)
    srd(a, 8, 4, WS_SIZE)
    stamp(0)
    srd(a, 28, 44, S * D * 2)
    a(f"""
    s_mov_b32 s34, {D*F*2:#x}
    s_mov_b32 s{sStride}, 3456
    s_cmp_lt_u32 s{sJ}, 4
    s_cselect_b32 s32, s46, s56
    s_cselect_b32 s33, s47, s57
    s_cselect_b32 s34, {D*D*2:#x}, s34
    s_cselect_b32 s{sStride}, 1280, s{sStride}
    s_cselect_b32 s3, 0, 4
    s_cselect_b32 s38, 0, {F*2}
    s_mov_b32 s35, 0x00020000
    s_sub_u32 s3, s{sJ}, s3
    s_mul_i32 s{sCol}, s3, 320
    s_mov_b32 s36, s58
    s_mov_b32 s37, s59
    s_mov_b32 s39, 0x00020000
    s_cmp_lt_u32 s{sLW}, 2
    s_cselect_b32 s6, s48, s50
    s_cselect_b32 s7, s49, s51
    s_cmp_eq_u32 s{sJ}, 15
    s_cselect_b32 s32, s6, s32
    s_cselect_b32 s33, s7, s33
    s_cselect_b32 s34, {D*DH*2}, s34
    s_cselect_b32 s38, 0, s38
    s_lshl_b32 s{sWstep}, s{sStride}, 6
    s_cmp_ge_u32 s{sW}, 4
    s_cbranch_scc1 L_{name}_loader
    """)

    def tr_addr(dst, stride, hrows):
        a(f"""
        v_lshrrev_b32 v{T0}, 5, v{LANE}
        v_bfe_u32 v{T1}, v{LANE}, 2, 2
        v_lshl_add_u32 v{T0}, v{T0}, {hrows}, v{T1}
        v_mul_u32_u24 v{T0}, {stride}, v{T0}
        v_bfe_u32 v{T1}, v{LANE}, 4, 1
        v_lshl_add_u32 v{T0}, v{T1}, 5, v{T0}
        v_and_b32 v{T1}, 3, v{LANE}
        v_lshl_add_u32 v{dst}, v{T1}, 3, v{T0}
        """)

    ACC = 16
    FR = 96
    aX0 = 8
    aX = 12
    aW0, aW = 7, 6
    a(f"""
    v_and_b32 v{T0}, 31, v{LANE}
    s_lshl_b32 s3, s{sW}, 5
    v_add_u32 v{T0}, s3, v{T0}                 ; row 0..127
    v_bfe_u32 v{T1}, v{T0}, 1, 3
    v_lshrrev_b32 v{T2}, 5, v{LANE}
    v_xor_b32 v{T1}, v{T1}, v{T2}              ; h ^ swz
    v_lshlrev_b32 v{T0}, 7, v{T0}
    """)
    for ks in range(4):
        a(f"v_xor_b32 v{T2}, {2*ks}, v{T1}")
        a(f"v_lshl_add_u32 v{aX0+ks}, v{T2}, 4, v{T0}")
        a(f"v_mov_b32 v{aX+ks}, v{aX0+ks}")
    for i in range(80): a(f"v_mov_b32 v{ACC+i}, 0")
    a(f"s_mov_b32 s{sSlotX}, 0")
    a(f"s_mov_b32 s{sSlotW}, 0")
    a(f"s_cmp_eq_u32 s{sJ}, 15")
    a(f"s_cbranch_scc1 L_{name}_ckv")

    def compute_loop(tag, nt, stride, toff, ring):
        tr_addr(aW0, stride, 3)
        a(f"v_add_u32 v{aW0}, {WBASE}, v{aW0}")
        a(f"v_mov_b32 v{aW}, v{aW0}")
        lg = Cnt(a, "lgkmcnt", 15)
        def reads(ks):
            b = FR + (ks % 2) * 24
            r = [(f"ds_read_b128 {vr(b,4)}, v{aX+ks}", ("x", ks % 2))]
            for t in range(nt):
                for sec in range(2):
                    r.append((f"ds_read_b64_tr_b16 {vr(b+4+4*t+2*sec,2)}, v{aW} offset:{(16*ks+4*sec)*stride + toff[t]}", ("w", t, ks % 2)))
            return r
        stamp(1)
        a("s_barrier")
        stamp(2)
        for s, tg in reads(0): a(s)
        a(f"L_{name}_{tag}loop:")
        lg.q = [tg for s, tg in reads(0)]
        for ks in range(4):
            b = FR + (ks % 2) * 24
            if ks == 3:
                lg.drain()
                a("s_barrier")
                a(f"s_add_u32 s{sSlotX}, s{sSlotX}, {XSLOT}")
                a(f"s_and_b32 s{sSlotX}, s{sSlotX}, {4*XSLOT-1}")
                if ring:
                    a(f"s_add_u32 s{sSlotW}, s{sSlotW}, {WSLOT}")
                    a(f"s_cmp_eq_u32 s{sSlotW}, {4*WSLOT}")
                    a(f"s_cselect_b32 s{sSlotW}, 0, s{sSlotW}")
                else:
                    a(f"s_add_u32 s{sSlotW}, s{sSlotW}, {64*stride}")
                for k in range(4): a(f"v_add_u32 v{aX+k}, s{sSlotX}, v{aX0+k}")
                a(f"v_add_u32 v{aW}, s{sSlotW}, v{aW0}")
            nx = reads((ks + 1) % 4)
            per = -(-len(nx) // max(nt - 1, 1))
            for t in range(nt):
                lg.need(("x", ks % 2)); lg.need(("w", t, ks % 2))
                a(f"v_mfma_f32_32x32x16_bf16 {vr(ACC+16*t,16)}, {vr(b+4+4*t,4)}, {vr(b,4)}, {vr(ACC+16*t,16)}")
                for s, tg in nx[t*per:(t+1)*per]:
                    a(s); lg.issue(tg)
        a(f"s_add_u32 s{sCnt}, s{sCnt}, 1")
        a(f"s_cmp_lt_u32 s{sCnt}, 10")
        a(f"s_cbranch_scc1 L_{name}_{tag}loop")
        stamp(3)
        CF = FR + 24
        RS = T2
        a(f"""
        s_waitcnt lgkmcnt(0)
        v_and_b32 v{T0}, 31, v{LANE}
        v_lshlrev_b32 v{T1}, 4, v{T0}
        v_add_u32 v{T2}, {CSA}, v{T1}
        v_add_u32 v{T1}, {BIASA}, v{T1}
        v_cndmask_b32 v{T1}, v{T2}, v{T1}, s[{sHI}:{sHI+1}]
        s_lshl_b32 s3, s{sW}, 7
        s_add_u32 s3, s3, {STATA}
        v_lshl_add_u32 v{T0}, v{T0}, 2, s3
        ds_read_b32 v{T3}, v{T0}
        """)
        for t in range(nt):
            a(f"ds_read_b128 {vr(CF+4+4*t,4)}, v{T1} offset:{t*512}")
        a(f"""
        s_waitcnt lgkmcnt({nt})
        v_and_b32 v{T0}, 0xffff, v{T3}
        v_lshl_or_b32 v{T0}, v{T0}, 16, v{T0}          ; (-mu,-mu)
        v_lshrrev_b32 v{T1}, 16, v{T3}                 ; (sigma, 0)
        v_and_b32 v{RS}, 0xffff0000, v{T3}
        v_rcp_f32 v{RS}, v{RS}
        v_cndmask_b32 v{CF}, v{T0}, v{T1}, s[{sHI}:{sHI+1}]
        v_cndmask_b32 v{CF+1}, v{T0}, 0, s[{sHI}:{sHI+1}]
        v_cndmask_b32 v{CF+2}, v{T0}, 0, s[{sHI}:{sHI+1}]
        v_cndmask_b32 v{CF+3}, v{T0}, 0, s[{sHI}:{sHI+1}]
        s_waitcnt lgkmcnt(0)
        s_nop 0
        """)
        for t in range(nt):
            a(f"v_mfma_f32_32x32x16_bf16 {vr(ACC+16*t,16)}, {vr(CF+4+4*t,4)}, {vr(CF,4)}, {vr(ACC+16*t,16)}")
        a(f"s_lshl_b32 s26, s{sRB}, 2")
        a(f"s_add_u32 s26, s26, s{sW}                  ; rt32")
        a("s_nop 9")
        stamp(4)
        return RS

    RS = compute_loop("c", 5, 320, [64 * t for t in range(5)], True)
    a(f"s_cmp_ge_u32 s{sJ}, 4")
    a(f"s_cbranch_scc1 L_{name}_eph")
    a(f"""
    v_mul_f32 v{RS}, {f32(QSCALE)}, v{RS}
    s_mul_i32 s26, s26, {QF_RT}
    s_mul_i32 s3, s{sJ}, {5*2048}
    s_add_u32 s26, s26, s3
    v_lshlrev_b32 v{T0}, 3, v{LANE}
    """)
    for t in range(5):
        for r in range(16): a(f"v_mul_f32 v{ACC+16*t+r}, v{RS}, v{ACC+16*t+r}")
        for r in range(8): a(f"v_cvt_pk_bf16_f32 v{ACC+16*t+r}, v{ACC+16*t+2*r}, v{ACC+16*t+2*r+1}")
        for i in range(4):
            a(f"buffer_store_dwordx2 {vr(ACC+16*t+2*i,2)}, v{T0}, s[8:11], s26 offen offset:{(t%2)*2048 + i*512}")
        if t % 2 == 1: a(f"s_add_u32 s26, s26, 4096")
    a(f"s_branch L_{name}_fin")
    a(f"L_{name}_eph:")
    a(f"""
    s_mul_i32 s26, s26, {AF_RT}
    s_sub_u32 s3, s{sJ}, 4
    s_mul_i32 s3, s3, {10*1024}
    s_add_u32 s26, s26, s3
    s_add_u32 s26, s26, {AF_OFF}
    v_lshlrev_b32 v{T0}, 4, v{LANE}
    """)
    for t in range(5):
        if t == 4:
            a(f"s_cmp_eq_u32 s{sJ}, 14")
            a(f"s_cbranch_scc1 L_{name}_fin")
        for r in range(16): a(f"v_mul_f32 v{ACC+16*t+r}, v{RS}, v{ACC+16*t+r}")
        for r in range(16): a(f"v_mul_f32_e64 v{ACC+16*t+r}, v{ACC+16*t+r}, |v{ACC+16*t+r}|")
        for r in range(8): a(f"v_cvt_pk_bf16_f32 v{ACC+16*t+r}, v{ACC+16*t+2*r}, v{ACC+16*t+2*r+1}")
        for r in range(8): a(f"v_pk_max_i16 v{ACC+16*t+r}, v{ACC+16*t+r}, 0")
        for i in range(2):
            a(f"buffer_store_dwordx4 {vr(ACC+16*t+4*i,4)}, v{T0}, s[8:11], s26 offen offset:{(t%2)*2048 + i*1024}")
        if t % 2 == 1: a(f"s_add_u32 s26, s26, 4096")
    a(f"s_branch L_{name}_fin")
    a(f"L_{name}_ckv:")
    RS = compute_loop("k", 2, 40, [0, KVW_V], False)
    Kt, Vt = ACC, ACC + 16
    a(f"""
    s_mul_i32 s26, s26, {KV_TILE}
    s_add_u32 s26, s26, {KV_OFF}
    v_lshlrev_b32 v{T0}, 4, v{LANE}
    v_lshlrev_b32 v{T1}, 3, v{LANE}
    v_bfe_u32 v{T3}, v{LANE}, 3, 2
    v_mul_u32_u24 v{T3}, {KV_VB}, v{T3}
    v_and_b32 v{aW}, 7, v{LANE}
    v_lshl_add_u32 v{T3}, v{aW}, 1, v{T3}
    v_lshrrev_b32 v{aW}, 5, v{LANE}
    v_lshl_add_u32 v{T3}, v{aW}, 6, v{T3}
    """)
    for r in range(12):
        a(f"v_mul_f32 v{Kt+r}, v{RS}, v{Kt+r}")
        a(f"v_mul_f32 v{Vt+r}, v{RS}, v{Vt+r}")
    a(f"v_cndmask_b32 v{Vt+8}, v{Vt+8}, 1.0, s[{sHI}:{sHI+1}]")
    a(f"v_cndmask_b32 v{Vt+9}, v{Vt+9}, 0, s[{sHI}:{sHI+1}]")
    for r in range(6):
        a(f"v_cvt_pk_bf16_f32 v{Kt+r}, v{Kt+2*r}, v{Kt+2*r+1}")
        a(f"v_cvt_pk_bf16_f32 v{Vt+r}, v{Vt+2*r}, v{Vt+2*r+1}")
    a(f"buffer_store_dwordx4 {vr(Kt,4)}, v{T0}, s[8:11], s26 offen")
    for r in range(6):
        i, e = r // 2, (r % 2) * 2
        if r == 5:
            a("s_mov_b32 exec_hi, 0")
            a(f"buffer_store_dwordx2 {vr(Kt+4,2)}, v{T1}, s[8:11], s26 offen offset:{KV_K2}")
        a(f"buffer_store_short v{Vt+r}, v{T3}, s[8:11], s26 offen offset:{KV_V + (8*i+e)*16}")
        a(f"buffer_store_short_d16_hi v{Vt+r}, v{T3}, s[8:11], s26 offen offset:{KV_V + (8*i+e+1)*16}")
    a(f"s_branch L_{name}_fin")

    a(f"L_{name}_loader:")
    vX, vW = 16, 20
    SUM, SQ, CS = 28, 32, 36
    XB, WB = 48, 64
    ONES, aXs0, aXs, aWs0, aWs, vR, aR = 41, 42, 43, 44, 45, 46, 47
    BI = 88
    sU, sRo = 26, 27
    a(f"""
    v_lshlrev_b32 v{T0}, 1, v{LANE}
    buffer_load_ushort v{BI}, v{T0}, s[36:39], s{sCol} offen
    buffer_load_ushort v{BI+4}, v{T0}, s[36:39], s{sCol} offen offset:128
    buffer_load_ushort v{BI+8}, v{T0}, s[36:39], s{sCol} offen offset:256
    """)
    a(f"""
    s_lshl_b32 s{sU}, s2, 2
    s_add_u32 s{sU}, s{sU}, s{sLW}
    s_mul_i32 s3, s{sU}, 52429
    s_lshr_b32 s6, s3, 18                       ; ks = u/5
    s_mul_i32 s3, s6, 5
    s_sub_u32 s7, s{sU}, s3                     ; cg = u%5
    s_mov_b32 s42, {D*D*2:#x}
    s_cmp_lt_u32 s6, 108
    s_cselect_b32 s40, s54, s52
    s_cselect_b32 s41, s55, s53
    s_cselect_b32 s42, {F*D*2:#x}, s42
    s_cselect_b32 s3, 0, 108
    s_mov_b32 s43, 0x00020000
    s_sub_u32 s3, s6, s3
    s_mul_i32 s3, s3, {16*1280}
    s_lshl_b32 s{sRo}, s7, 8
    s_add_u32 s3, s3, s{sRo}
    s_mul_i32 s{sRo}, s7, {4*WF_CT}
    s_lshl_b32 s6, s6, 10
    s_add_u32 s{sRo}, s{sRo}, s6
    s_add_u32 s{sRo}, s{sRo}, {WF_OFF}
    v_lshrrev_b32 v{T0}, 4, v{LANE}
    v_mul_u32_u24 v{T0}, 1280, v{T0}
    v_and_b32 v{T1}, 15, v{LANE}
    v_lshl_add_u32 v{vR}, v{T1}, 4, v{T0}
    s_lshl_b32 s6, s{sLW}, 12
    s_add_u32 s6, s6, {SCR}
    s_mov_b32 m0, s6
    s_nop 0
    """)
    for i in range(4):
        a(f"buffer_load_dwordx4 v{vR}, s[40:43], s3 offen offset:{i*1024} lds")
        a(f"s_add_u32 s3, s3, {4*1280 - 1024}")
    tr_addr(aR, 256, 2)
    a(f"v_add_u32 v{aR}, s6, v{aR}")
    a(f"""
    v_lshrrev_b32 v{T0}, 3, v{LANE}             ; row_in
    v_and_b32 v{T1}, 7, v{LANE}
    v_lshrrev_b32 v{T2}, 4, v{LANE}
    v_xor_b32 v{T1}, v{T1}, v{T2}
    s_lshl_b32 s3, s{sLW}, 5
    v_add_u32 v{T0}, s3, v{T0}
    v_mul_u32_u24 v{T0}, 1280, v{T0}
    """)
    for i in range(4):
        a(f"v_xor_b32 v{T2}, {4*(i&1)}, v{T1}")
        a(f"v_lshl_add_u32 v{T2}, v{T2}, 4, v{T0}")
        a(f"v_add_u32 v{vX+i}, {i*(8*1280-1024)}, v{T2}")
    a(f"""
    s_lshl_b32 s3, s{sLW}, 12
    v_lshl_add_u32 v{aXs0}, v{LANE}, 4, s3
    v_mov_b32 v{ONES}, 0x3f803f80
    s_lshl_b32 s{sSlotX}, s{sLW}, 12
    s_mov_b32 s60, 0
    s_mov_b32 s61, 0
    """)
    for i in range(13): a(f"v_mov_b32 v{SUM+i}, 0")
    a(f"s_cmp_eq_u32 s{sJ}, 15")
    a(f"s_cbranch_scc1 L_{name}_lkv")

    def dma_x():
        a(f"s_mov_b32 m0, s{sSlotX}")
        a(f"s_add_u32 s{sSlotX}, s{sSlotX}, {XSLOT}")
        for i in range(4):
            a(f"buffer_load_dwordx4 v{vX+i}, s[28:31], s{sXo} offen offset:{i*1024} lds")
        a(f"s_and_b32 s{sSlotX}, s{sSlotX}, {4*XSLOT-1}")
        a(f"s_add_u32 s{sXo}, s{sXo}, 128")
    def dma_w():
        a(f"s_mov_b32 m0, s{sSlotW}")
        a(f"s_add_u32 s3, s{sSlotW}, 4096")
        for i in range(4):
            a(f"buffer_load_dwordx4 v{vW+i}, s[32:35], s{sWo} offen offset:{i*1024} lds")
        a(f"s_mov_b32 m0, s3")
        a(f"s_add_u32 s{sSlotW}, s{sSlotW}, {WSLOT}")
        a(f"buffer_load_dwordx4 v{vW+4}, s[32:35], s{sWo} offen lds")
        a(f"s_sub_u32 s3, s{sSlotW}, {4*WSLOT}")
        a(f"s_cmp_ge_u32 s{sSlotW}, {WBASE + 4*WSLOT}")
        a(f"s_cselect_b32 s{sSlotW}, s3, s{sSlotW}")
        a(f"s_add_u32 s{sWo}, s{sWo}, s{sWstep}")

    def loader(tag, nt, stride, toff, ring):
        npre = 0
        if ring:
            a(f"s_lshl_b32 s3, s{sLW}, 4")
            for i in range(5):
                a(f"""
                v_add_u32 v{T0}, {64*i}, v{LANE}
                v_mul_u32_u24 v{T1}, 3277, v{T0}
                v_lshrrev_b32 v{T1}, 16, v{T1}
                v_mul_u32_u24 v{T2}, 20, v{T1}
                v_sub_u32 v{T2}, v{T0}, v{T2}
                v_add_u32 v{T1}, s3, v{T1}
                v_mul_lo_u32 v{T1}, v{T1}, s{sStride}
                v_lshl_add_u32 v{T1}, v{T2}, 4, v{T1}
                v_subrev_u32 v{vW+i}, {(i%4)*1024}, v{T1}
                """)
            a(f"s_mov_b32 s{sWo}, s{sCol}")
            a(f"s_mul_i32 s{sSlotW}, s{sLW}, 5120")
            a(f"s_add_u32 s{sSlotW}, s{sSlotW}, {WBASE}")
            per = 9
        else:
            a(f"""
            v_lshlrev_b32 v{vW}, 4, v{LANE}
            s_and_b32 s3, s{sLW}, 1
            s_mul_i32 s{sWo}, s3, {13*1024}
            s_mul_i32 s6, s{sLW}, {13*1024}
            s_add_u32 s6, s6, {WBASE}
            """)
            for i in range(13):
                if i % 4 == 0:
                    a(f"s_mov_b32 m0, s6")
                    a(f"s_add_u32 s6, s6, 4096")
                a(f"buffer_load_dwordx4 v{vW}, s[32:35], s{sWo} offen offset:{(i%4)*1024} lds")
                if i % 4 == 3: a(f"s_add_u32 s{sWo}, s{sWo}, 4096")
            npre = 13
            per = 4
        for st in range(3):
            dma_x()
            if ring: dma_w()
        tr_addr(aWs0, stride, 3)
        a(f"s_mul_i32 s3, s{sLW}, {16*stride}")
        a(f"s_add_u32 s3, s3, {WBASE}")
        a(f"v_add_u32 v{aWs0}, s3, v{aWs0}")
        stamp(1)
        a(f"s_waitcnt vmcnt({npre + 3*per})")
        for ct in range(4):
            for sec in range(2):
                a(f"ds_read_b64_tr_b16 {vr(XB+4*ct+2*sec,2)}, v{aR} offset:{sec*8*256 + ct*64}")
        a(f"v_lshlrev_b32 v{T0}, 4, v{LANE}")
        a(f"s_cmp_lt_u32 s{sU}, 740")
        a(f"s_cselect_b32 s{sRo}, s{sRo}, {OOB}")
        a("s_waitcnt lgkmcnt(0)")
        for ct in range(4):
            a(f"buffer_store_dwordx4 {vr(XB+4*ct,4)}, v{T0}, s[8:11], s{sRo} offen")
            a(f"s_add_u32 s{sRo}, s{sRo}, {WF_CT}")
        a(f"s_cmp_lg_u32 s{sLW}, 0")
        a(f"s_cbranch_scc1 L_{name}_{tag}nb")
        for i in range(3):
            for e in range(1, 4): a(f"v_mov_b32 v{BI+4*i+e}, 0")
        a(f"v_add_u32 v{T0}, {BIASA}, v{T0}")
        for i in range(3):
            a(f"ds_write_b128 v{T0}, {vr(BI+4*i,4)} offset:{i*1024}")
        a(f"L_{name}_{tag}nb:")
        stamp(2)
        a(f"L_{name}_{tag}loop:")
        a(f"s_waitcnt vmcnt({2*per}) lgkmcnt(0)")
        a("s_barrier")
        a(f"v_add_u32 v{aXs}, s60, v{aXs0}")
        a(f"v_add_u32 v{aWs}, s61, v{aWs0}")
        for i in range(4):
            a(f"ds_read_b128 {vr(XB+4*i,4)}, v{aXs} offset:{i*1024}")
        for t in range(nt):
            for sec in range(2):
                a(f"ds_read_b64_tr_b16 {vr(WB+4*t+2*sec,2)}, v{aWs} offset:{4*sec*stride + toff[t]}")
        a(f"s_cmp_lt_u32 s{sCnt}, 7")
        a(f"s_cselect_b32 s{sXo}, s{sXo}, {OOB}")
        if ring: a(f"s_cselect_b32 s{sWo}, s{sWo}, {OOB}")
        dma_x()
        if ring: dma_w()
        a(f"s_add_u32 s60, s60, {XSLOT}")
        a(f"s_and_b32 s60, s60, {4*XSLOT-1}")
        if ring:
            a(f"s_add_u32 s61, s61, {WSLOT}")
            a(f"s_cmp_eq_u32 s61, {4*WSLOT}")
            a(f"s_cselect_b32 s61, 0, s61")
        else:
            a(f"s_add_u32 s61, s61, {64*stride}")
        a(f"s_waitcnt lgkmcnt({2*nt})")
        for e in range(4):
            for i in range(4):
                a(f"v_dot2c_f32_bf16 v{SUM+i}, v{XB+4*i+e}, v{ONES}")
                a(f"v_dot2c_f32_bf16 v{SQ+i}, v{XB+4*i+e}, v{XB+4*i+e}")
        a("s_waitcnt lgkmcnt(0)")
        for e in range(4):
            for t in range(nt):
                a(f"v_dot2c_f32_bf16 v{CS+t}, v{WB+4*t+e}, v{ONES}")
        a(f"s_add_u32 s{sCnt}, s{sCnt}, 1")
        a(f"s_cmp_lt_u32 s{sCnt}, 10")
        a(f"s_cbranch_scc1 L_{name}_{tag}loop")
        stamp(3)
        a("s_nop 3")
        for mod in ("quad_perm:[1,0,3,2]", "quad_perm:[2,3,0,1]", "row_half_mirror"):
            for i in range(8):
                a(f"v_add_f32_dpp v{SUM+i}, v{SUM+i}, v{SUM+i} {mod} row_mask:0xf bank_mask:0xf")
        for t in range(nt): a(f"v_mov_b32 v{WB+t}, v{CS+t}")
        a("s_nop 1")
        for t in range(nt): a(f"v_permlane32_swap_b32 v{WB+t}, v{CS+t}")
        a("s_nop 1")
        for t in range(nt): a(f"v_add_f32 v{CS+t}, v{CS+t}, v{WB+t}")
        for t in range(nt): a(f"v_and_b32 v{WB+t}, 0xffff0000, v{CS+t}")
        for t in range(nt): a(f"v_sub_f32 v{CS+t}, v{CS+t}, v{WB+t}")
        for t in range(nt): a(f"v_cvt_pk_bf16_f32 v{CS+t}, v{WB+t}, v{CS+t}")
        a(f"""
        v_and_b32 v{T0}, 31, v{LANE}
        s_lshl_b32 s3, s{sLW}, 2
        s_add_u32 s3, s3, {CSA}
        v_lshl_add_u32 v{T0}, v{T0}, 4, s3
        """)
        for t in range(nt): a(f"ds_write_b32 v{T0}, v{CS+t} offset:{t*512}")
        inv = f32(1.0 / D)
        for i in range(4): a(f"v_mul_f32 v{SUM+i}, {inv}, v{SUM+i}")
        for i in range(4): a(f"v_mul_f32 v{SQ+i}, {inv}, v{SQ+i}")
        for i in range(4): a(f"v_fma_f32 v{SQ+i}, -v{SUM+i}, v{SUM+i}, v{SQ+i}")
        for i in range(4): a(f"v_max_f32 v{SQ+i}, 0, v{SQ+i}")
        for i in range(4): a(f"v_cvt_pk_bf16_f32 v{SQ+i}, v{SQ+i}, v{SQ+i}")
        for i in range(4): a(f"v_and_b32 v{SQ+i}, 0xffff0000, v{SQ+i}")
        for i in range(4): a(f"v_add_f32 v{SQ+i}, {f32(1e-5)}, v{SQ+i}")
        for i in range(4): a(f"v_cvt_pk_bf16_f32 v{SQ+i}, v{SQ+i}, v{SQ+i}")
        for i in range(4): a(f"v_and_b32 v{SQ+i}, 0xffff0000, v{SQ+i}")
        for i in range(4): a(f"v_sqrt_f32 v{SQ+i}, v{SQ+i}")
        a("s_nop 0")
        for i in range(4): a(f"v_cvt_pk_bf16_f32 v{SQ+i}, -v{SUM+i}, v{SQ+i}")
        a(f"""
        v_lshrrev_b32 v{T0}, 3, v{LANE}
        s_lshl_b32 s3, s{sLW}, 7
        s_add_u32 s3, s3, {STATA}
        v_lshl_add_u32 v{T0}, v{T0}, 2, s3
        """)
        for i in range(4): a(f"ds_write_b32 v{T0}, v{SQ+i} offset:{i*32}")
        a("s_waitcnt lgkmcnt(0)")
        stamp(4)
        a("s_barrier")
        a(f"s_branch L_{name}_fin")

    loader("l", 5, 320, [64 * t for t in range(5)], True)
    a(f"L_{name}_lkv:")
    loader("m", 2, 40, [0, KVW_V], False)
    a(f"L_{name}_fin:")
    if prof: prof_store(a, sW, 3, 16, n=6)
    a(f"L_{name}_end:")
    a("s_endpgm")
    return kernel_head(name) + a.text() + kernel_desc(name, NV, 96), f"; @launch kernel={name} grid=(256,1,1) block=(512,1,1) lds={G1_LDS}"
```

```python
from common import *
RED_ROW = 144
RED_TILE = 32 * RED_ROW
RED_WAVE = 5 * RED_TILE
G2_LDS = 4 * RED_WAVE

def gen_gemm2(name="gemm2_kernel"):
    a = Asm()
    ACC = 16
    BUF = 96
    NV = 176
    LANE, vL16, T0, T1, T2, T3 = 1, 2, 3, 4, 5, 6
    sW, sRB, sJ = 12, 13, 14
    sB = [20, 21, 22, 23, 24]
    sRH, sCA, sCB, sCH = 25, 26, 27, 28
    a(f"""
    s_cmp_ge_u32 s2, 256
    s_cbranch_scc1 L_{name}_end
    s_load_dwordx2 s[4:5], s[0:1], {KA['ws']}
    s_load_dwordx2 s[36:37], s[0:1], {KA['x']}
    s_load_dwordx4 s[40:43], s[0:1], {KA['b2']}
    v_lshrrev_b32 v{T0}, 6, v0
    v_and_b32 v{LANE}, 63, v0
    s_and_b32 s6, s2, 7
    s_lshr_b32 s7, s2, 3
    v_readfirstlane_b32 s{sW}, v{T0}
    s_lshl_b32 s6, s6, 2
    s_lshr_b32 s3, s7, 3
    s_add_u32 s{sRB}, s6, s3
    s_and_b32 s{sJ}, s7, 7
    v_lshlrev_b32 v{vL16}, 4, v{LANE}
    s_and_b32 s{sRH}, s{sJ}, 1
    s_lshr_b32 s3, s{sJ}, 1
    s_mul_i32 s3, s3, 5
    s_add_u32 s{sCH}, s3, 2
    s_mul_i32 s6, s{sRH}, 3
    s_add_u32 s{sCA}, s3, s6
    s_add_u32 s{sCB}, s{sCA}, 1
    s_mul_i32 s7, s{sW}, {37*1024}
    s_lshl_b32 s3, s{sRB}, 1
    s_add_u32 s6, s3, s{sRH}
    s_mul_i32 s{sB[0]}, s6, {AF_RT}
    s_xor_b32 s6, s6, 1
    s_mul_i32 s{sB[1]}, s6, {AF_RT}
    s_mul_i32 s{sB[2]}, s{sCA}, {WF_CT}
    s_mul_i32 s{sB[3]}, s{sCB}, {WF_CT}
    s_mul_i32 s{sB[4]}, s{sCH}, {WF_CT}
    s_add_u32 s3, s7, {AF_OFF}
    s_add_u32 s{sB[0]}, s{sB[0]}, s3
    s_add_u32 s{sB[1]}, s{sB[1]}, s3
    s_add_u32 s3, s7, {WF_OFF}
    s_add_u32 s{sB[2]}, s{sB[2]}, s3
    s_add_u32 s{sB[3]}, s{sB[3]}, s3
    s_add_u32 s{sB[4]}, s{sB[4]}, s3
    s_waitcnt lgkmcnt(0)
    """)
    srd(a, 8, 4, WS_SIZE)
    srd(a, 44, 36, S * D * 2)
    srd(a, 48, 40, D * 2)
    srd(a, 52, 42, S * D * 2)
    NK = 37; DEP = 4
    def load(ks):
        b = BUF + (ks % DEP) * 20
        for i in range(5):
            a(f"buffer_load_dwordx4 {vr(b+4*i,4)}, v{vL16}, s[8:11], s{sB[i]} offen offset:{(ks%4)*1024}")
        if ks % 4 == 3:
            for i in range(5): a(f"s_add_u32 s{sB[i]}, s{sB[i]}, 4096")
    for ks in range(DEP): load(ks)
    for i in range(80): a(f"v_mov_b32 v{ACC+i}, 0")
    for ks in range(NK):
        rem = min(DEP - 1, NK - 1 - ks)
        a(f"s_waitcnt vmcnt({rem*5})")
        b = BUF + (ks % DEP) * 20
        rH, rO, cA, cB, cH = [vr(b + 4 * i, 4) for i in range(5)]
        for t, (w, x) in enumerate([(cA, rH), (cA, rO), (cB, rH), (cB, rO), (cH, rH)]):
            a(f"v_mfma_f32_32x32x16_bf16 {vr(ACC+16*t,16)}, {w}, {x}, {vr(ACC+16*t,16)}")
        if ks + DEP < NK: load(ks + DEP)
    a(f"""
    v_and_b32 v{T0}, 31, v{LANE}
    v_mul_u32_u24 v{T0}, {RED_ROW}, v{T0}
    v_lshrrev_b32 v{T1}, 5, v{LANE}
    v_lshl_add_u32 v{T0}, v{T1}, 4, v{T0}
    s_mul_i32 s3, s{sW}, {RED_WAVE}
    v_add_u32 v{T0}, s3, v{T0}
    s_nop 7
    """)
    for t in range(5):
        for i in range(4):
            a(f"ds_write_b128 v{T0}, {vr(ACC+16*t+4*i,4)} offset:{t*RED_TILE + i*32}")
    a(f"""
    v_lshrrev_b32 v{T1}, 3, v0
    v_and_b32 v{T2}, 7, v0
    v_mul_u32_u24 v{T0}, {RED_ROW}, v{T1}
    v_lshl_add_u32 v{T0}, v{T2}, 4, v{T0}
    v_add_u32 v{T3}, {2*RED_WAVE}, v{T0}
    v_mul_u32_u24 v{T1}, 1280, v{T1}
    v_lshlrev_b32 v{T2}, 3, v{T2}               ; c*8
    v_add_u32 v{T1}, v{T1}, v{T2}               ; row*1280 + c*8
    s_lshl_b32 s3, s{sRB}, 1
    s_add_u32 s6, s3, s{sRH}
    s_mul_i32 s30, s6, {32*1280}
    s_xor_b32 s6, s6, 1
    s_mul_i32 s31, s6, {32*1280}
    s_lshl_b32 s{sCA}, s{sCA}, 6
    s_lshl_b32 s{sCB}, s{sCB}, 6
    s_lshl_b32 s{sCH}, s{sCH}, 6
    """)
    tl = [(30, sCA), (31, sCA), (30, sCB), (31, sCB), (30, sCH)]
    XB = BUF
    for t, (r, c) in enumerate(tl):
        a(f"s_add_u32 s{56+t}, s{r}, s{c}")
        a(f"buffer_load_dwordx2 {vr(XB+4*t,2)}, v{T1}, s[44:47], s{56+t} offen")
        a(f"buffer_load_dwordx2 {vr(XB+4*t+2,2)}, v{T2}, s[48:51], s{c} offen")
    a("s_waitcnt lgkmcnt(0)")
    a("s_barrier")
    P = ACC
    for t in range(5):
        for w in range(4):
            a(f"ds_read_b128 {vr(P+16*t+4*w,4)}, v{T0 if w < 2 else T3} offset:{(w%2)*RED_WAVE + t*RED_TILE}")
    a("s_waitcnt vmcnt(0)")
    U = BUF + 24
    for t in range(5):
        a(f"s_waitcnt lgkmcnt({min(15, (4-t)*4)})")
        p = P + 16 * t
        x0, b0 = XB + 4 * t, XB + 4 * t + 2
        for e in range(4):
            a(f"v_add_f32 v{p+e}, v{p+e}, v{p+4+e}")
            a(f"v_add_f32 v{p+8+e}, v{p+8+e}, v{p+12+e}")
        for e in range(4):
            a(f"v_add_f32 v{p+e}, v{p+e}, v{p+8+e}")
        for base in (x0, b0):
            for e in range(4):
                src = base + e // 2
                if e % 2 == 0: a(f"v_lshlrev_b32 v{U}, 16, v{src}")
                else: a(f"v_and_b32 v{U}, 0xffff0000, v{src}")
                a(f"v_add_f32 v{p+e}, v{p+e}, v{U}")
        a(f"v_cvt_pk_bf16_f32 v{p}, v{p}, v{p+1}")
        a(f"v_cvt_pk_bf16_f32 v{p+1}, v{p+2}, v{p+3}")
        a(f"buffer_store_dwordx2 {vr(p,2)}, v{T1}, s[52:55], s{56+t} offen")
    a(f"L_{name}_end:")
    a("s_endpgm")
    return kernel_head(name) + a.text() + kernel_desc(name, NV, 64), f"; @launch kernel={name} grid=(256,1,1) block=(256,1,1) lds={G2_LDS}"
```

```python
from build import *
def empty(name):
    return kernel_head(name) + "  s_endpgm\n" + kernel_desc(name, 8, 16), f"; @launch kernel={name} grid=(256,1,1) block=(256,1,1) lds=0"
base = [gemm1.gen_gemm1(), attn.gen_attn(), gemm2.gen_gemm2()]
build("full_e1.s", base + [empty("e1_kernel")])
build("full_e3.s", base + [empty("e1_kernel"), empty("e2_kernel"), empty("e3_kernel")])
build("full_e3pre.s", [empty("e1_kernel"), empty("e2_kernel"), empty("e3_kernel")] + base)
```

```python
import sys
from common import *
import attn, gemm2, gemm1, k2
def build(path, parts):
    launches = []; body = ""
    for p in parts:
        txt, launch = p
        launches.append(launch); body += txt
    hdr = open(f"cdna_kernels/{NAME}.s.ref").read().split("; Override launch")[0]
    out = hdr + "\n".join(launches) + "\n" + '.amdgcn_target "amdgcn-amd-amdhsa--gfx950"\n' + body
    open(path, "w").write(out)
if __name__ == "__main__":
    build("g1_only.s", [gemm1.gen_gemm1()])
    build("g1_prof.s", [gemm1.gen_gemm1(prof=True)])
    build("full.s", [gemm1.gen_gemm1(), k2.gen_k2()])
    build("k2_prof.s", [gemm1.gen_gemm1(), k2.gen_k2(prof=True)])
    for X in (("noprio",), ("sleep",), ("nogemm",)):
        build("k2_x_" + "_".join(X) + ".s", [gemm1.gen_gemm1(), k2.gen_k2(prof=True, X=X)])
    for X in (("nodma",), ("nopf",), ("nowt",)):
        build("g1_x_" + "_".join(X) + ".s", [gemm1.gen_gemm1(prof=True, X=X)])
```

```python
from common import *
XSLOT = 16384
WBASE = 65536
WSLOT = 20480
SCR = WBASE + 4 * WSLOT
BIASA = SCR
CSA = SCR + 4096
STATA = SCR + 8192
G1_LDS = 163840
KVW_V = 26624
QSCALE = DH ** -0.5 * 1.4426950408889634
OOB = 0x40000000

class Cnt:
    def __init__(self, a, kind, mx):
        self.a, self.kind, self.mx = a, kind, mx
        self.q = []
    def issue(self, tag): self.q.append(tag)
    def need(self, tag):
        idx = [i for i, t in enumerate(self.q) if t == tag]
        if not idx: return
        n = len(self.q) - 1 - idx[-1]
        self.a(f"s_waitcnt {self.kind}({min(n, self.mx)})")
        self.q = self.q[len(self.q) - min(n, self.mx):] if min(n, self.mx) else []
    def drain(self):
        self.a(f"s_waitcnt {self.kind}(0)"); self.q = []

def gen_gemm1(name="gemm1_kernel", prof=False, X=()):
    a = Asm()
    stamp = mk_stamp(a, prof, base=68)
    ST = "" if "nowt" in X else " sc0 sc1"
    SC = " sc0 sc1"
    LANE, T0, T1, T2, T3, T4 = 1, 2, 3, 4, 5, 6
    NV = 156
    sW, sRB, sJ, sLW, sStride, sCol, sXo, sWo, sSlotX, sSlotW, sCnt, sWstep = 12, 13, 14, 15, 16, 17, 18, 19, 20, 21, 22, 23
    sHI = 24
    sR, sJL = 62, 63
    a(f"""
    s_cmp_ge_u32 s2, 256
    s_cbranch_scc1 L_{name}_end
    s_load_dwordx8 s[44:51], s[0:1], 0
    s_load_dwordx4 s[56:59], s[0:1], {KA['w1']}  ; w1, b1
    s_load_dwordx2 s[52:53], s[0:1], {KA['wo']}
    s_load_dwordx2 s[54:55], s[0:1], {KA['w2']}
    s_load_dwordx4 s[4:7], s[0:1], {KA['dbg']}
    v_lshrrev_b32 v{T0}, 6, v0
    v_and_b32 v{LANE}, 63, v0
    s_and_b32 s26, s2, 7
    s_lshr_b32 s27, s2, 3
    v_readfirstlane_b32 s{sW}, v{T0}
    s_lshr_b32 s3, s26, 1
    s_lshl_b32 s3, s3, 2
    s_lshr_b32 s{sR}, s27, 3
    s_add_u32 s{sRB}, s{sR}, s3
    s_and_b32 s3, s26, 1
    s_lshl_b32 s3, s3, 3
    s_and_b32 s{sJL}, s27, 7                    ; j local
    s_add_u32 s{sJ}, s{sJL}, s3
    s_and_b32 s{sLW}, s{sW}, 3
    s_mov_b32 s{sHI}, 0
    s_mov_b32 s{sHI+1}, -1
    s_mov_b32 s{sCnt}, 0
    s_mov_b32 s34, {D*F*2:#x}
    s_mov_b32 s35, 0x00020000
    s_mov_b32 s{sStride}, 3456
    s_cmp_lt_u32 s{sJ}, 4
    s_cselect_b32 s34, {D*D*2:#x}, s34
    s_cselect_b32 s{sStride}, 1280, s{sStride}
    s_cselect_b32 s3, 0, 4
    s_sub_u32 s3, s{sJ}, s3
    s_mul_i32 s{sCol}, s3, 320
    s_lshl_b32 s{sWstep}, s{sStride}, 6
    s_mul_i32 s{sXo}, s{sRB}, {128*1280}
    s_cmp_ge_u32 s{sW}, 4
    s_cbranch_scc1 L_{name}_loader
    """)

    def tr_addr(dst, stride, hrows):
        a(f"""
        v_lshrrev_b32 v{T0}, 5, v{LANE}
        v_bfe_u32 v{T1}, v{LANE}, 2, 2
        v_lshl_add_u32 v{T0}, v{T0}, {hrows}, v{T1}
        v_mul_u32_u24 v{T0}, {stride}, v{T0}
        v_bfe_u32 v{T1}, v{LANE}, 4, 1
        v_lshl_add_u32 v{T0}, v{T1}, 5, v{T0}
        v_and_b32 v{T1}, 3, v{LANE}
        v_lshl_add_u32 v{dst}, v{T1}, 3, v{T0}
        """)
    def common_srds():
        srd(a, 28, 44, S * D * 2)
        srd(a, 8, 6, WS_SIZE)
        srd(a, 64, 4, 256)

    ACC = 16
    FR = 96
    aX0 = 8
    aX = 12
    aW0, aW = 7, 6
    sU, sRo = 26, 27
    PF = 152
    ONES = 149
    def prefetch():
        if "nopf" in X: return
        a(f"""
        v_lshrrev_b32 v{T0}, 2, v{LANE}
        s_lshl_b32 s3, s{sR}, 4
        v_add_u32 v{T0}, s3, v{T0}
        v_mul_lo_u32 v{T0}, v{T0}, s{sStride}
        v_and_b32 v{T1}, 3, v{LANE}
        v_min_u32 v{T1}, 2, v{T1}
        v_lshl_add_u32 v{T0}, v{T1}, 7, v{T0}
        s_lshl_b32 s3, s{sW}, 1
        s_add_u32 s3, s3, 2
        s_mul_i32 s3, s3, s{sWstep}
        s_and_b32 s60, s{sCol}, 0xffffff80
        s_add_u32 s3, s3, s60
        s_cmp_eq_u32 s{sJ}, 15
        s_cselect_b32 s3, {OOB}, s3
        s_add_u32 s60, s3, s{sWstep}
        buffer_load_dword v{PF}, v{T0}, s[32:35], s3 offen
        buffer_load_dword v{PF+1}, v{T0}, s[32:35], s60 offen
        v_and_b32 v{T0}, 15, v{LANE}
        s_lshl_b32 s3, s{sJL}, 4
        v_add_u32 v{T0}, s3, v{T0}
        v_mul_u32_u24 v{T0}, 1280, v{T0}
        v_lshrrev_b32 v{T1}, 4, v{LANE}
        v_lshl_add_u32 v{T0}, v{T1}, 7, v{T0}
        s_and_b32 s3, s{sW}, 1
        s_lshl_b32 s3, s3, 9
        s_add_u32 s3, s3, s{sXo}
        buffer_load_dword v{PF+2}, v{T0}, s[28:31], s3 offen offset:256
        """)
    NPF = 0 if "nopf" in X else 3
    def xaddr():
        a(f"""
        v_and_b32 v{T0}, 31, v{LANE}
        s_lshl_b32 s3, s{sW}, 5
        v_add_u32 v{T0}, s3, v{T0}                 ; row 0..127
        v_bfe_u32 v{T1}, v{T0}, 1, 3
        v_lshrrev_b32 v{T2}, 5, v{LANE}
        v_xor_b32 v{T1}, v{T1}, v{T2}              ; h ^ swz
        v_lshlrev_b32 v{T0}, 7, v{T0}
        """)
        for ks in range(4):
            a(f"v_xor_b32 v{T2}, {2*ks}, v{T1}")
            a(f"v_lshl_add_u32 v{aX0+ks}, v{T2}, 4, v{T0}")
            a(f"v_mov_b32 v{aX+ks}, v{aX0+ks}")
        for i in range(80): a(f"v_mov_b32 v{ACC+i}, 0")
    a(f"v_mov_b32 v{ONES}, 0x3f803f80")
    a(f"s_mov_b32 s{sSlotX}, 0")
    a(f"s_mov_b32 s{sSlotW}, 0")
    a(f"s_cmp_eq_u32 s{sW}, 0")
    a(f"s_cbranch_scc1 L_{name}_w0")
    a(f"""
    s_mul_i32 s{sU}, s2, 3
    s_add_u32 s{sU}, s{sU}, s{sW}
    s_sub_u32 s{sU}, s{sU}, 1
    s_mul_i32 s3, s{sU}, 52429
    s_lshr_b32 s60, s3, 18                      ; ks = u/5
    s_mul_i32 s3, s60, 5
    s_sub_u32 s61, s{sU}, s3                    ; cg = u%5
    v_lshrrev_b32 v{T0}, 4, v{LANE}
    v_mul_u32_u24 v{T0}, 1280, v{T0}
    v_and_b32 v{T1}, 15, v{LANE}
    v_lshl_add_u32 v{T3}, v{T1}, 4, v{T0}
    s_mul_i32 s{sRo}, s61, {4*WF_CT}
    s_lshl_b32 s3, s60, 10
    s_add_u32 s{sRo}, s{sRo}, s3
    s_add_u32 s{sRo}, s{sRo}, {WF_OFF}
    s_cmp_lt_u32 s{sU}, 740
    s_cselect_b32 s{sRo}, s{sRo}, {OOB}
    s_lshl_b32 s{sU}, s{sW}, 12
    s_add_u32 s{sU}, s{sU}, {SCR}
    s_mov_b32 m0, s{sU}
    s_mov_b32 s42, {D*D*2:#x}
    s_mov_b32 s43, 0x00020000
    s_cmp_lt_u32 s60, 108
    s_cselect_b32 s42, {F*D*2:#x}, s42
    s_cselect_b32 s3, 0, 108
    s_waitcnt lgkmcnt(0)
    s_cselect_b32 s40, s54, s52
    s_cselect_b32 s41, s55, s53
    s_sub_u32 s3, s60, s3
    s_mul_i32 s3, s3, {16*1280}
    s_lshl_b32 s61, s61, 8
    s_add_u32 s3, s3, s61
    """)
    stamp(0)
    for i in range(4):
        a(f"buffer_load_dwordx4 v{T3}, s[40:43], s3 offen offset:{i*1024} lds")
        a(f"s_add_u32 s3, s3, {4*1280 - 1024}")
    common_srds()
    a(f"""
    s_cmp_lt_u32 s{sJ}, 4
    s_cselect_b32 s32, s46, s56
    s_cselect_b32 s33, s47, s57
    """)
    prefetch()
    tr_addr(T3, 256, 2)
    a(f"v_add_u32 v{T3}, s{sU}, v{T3}")
    xaddr()
    a(f"s_waitcnt vmcnt({NPF})")
    for ct in range(4):
        for sec in range(2):
            a(f"ds_read_b64_tr_b16 {vr(FR+4*ct+2*sec,2)}, v{T3} offset:{sec*8*256 + ct*64}")
    a(f"v_lshlrev_b32 v{T0}, 4, v{LANE}")
    a("s_waitcnt lgkmcnt(0)")
    for ct in range(4):
        a(f"buffer_store_dwordx4 {vr(FR+4*ct,4)}, v{T0}, s[8:11], s{sRo} offen{ST}")
        a(f"s_add_u32 s{sRo}, s{sRo}, {WF_CT}")
    a(f"s_branch L_{name}_nb")
    a(f"L_{name}_w0:")
    XS = FR
    BI = 136
    SUM, SQ = 144, 145
    a(f"""
    v_lshrrev_b32 v{T0}, 3, v{LANE}
    v_mul_u32_u24 v{T0}, 1280, v{T0}
    v_and_b32 v{T1}, 7, v{LANE}
    v_lshl_add_u32 v{T3}, v{T1}, 4, v{T0}
    s_mul_i32 s3, s{sJ}, {8*1280}
    s_add_u32 s3, s3, s{sXo}
    v_lshlrev_b32 v{T2}, 1, v{LANE}
    s_mov_b32 s39, 0x00020000
    s_sub_u32 s60, s{sJ}, 4
    s_cmp_lt_u32 s60, 11
    s_cselect_b32 s38, {F*2}, 0
    s_waitcnt lgkmcnt(0)
    """)
    common_srds()
    stamp(0)
    for i in range(10):
        a(f"buffer_load_dwordx4 {vr(XS+4*i,4)}, v{T3}, s[28:31], s3 offen offset:{i*128}")
    a(f"""
    s_mov_b32 s36, s58
    s_mov_b32 s37, s59
    s_cmp_lt_u32 s{sJ}, 4
    s_cselect_b32 s32, s46, s56
    s_cselect_b32 s33, s47, s57
    buffer_load_ushort v{BI}, v{T2}, s[36:39], s{sCol} offen
    buffer_load_ushort v{BI+1}, v{T2}, s[36:39], s{sCol} offen offset:128
    buffer_load_ushort v{BI+2}, v{T2}, s[36:39], s{sCol} offen offset:256
    """)
    prefetch()
    xaddr()
    a(f"""
    s_lshl_b32 s3, s2, 7
    s_add_u32 s3, s3, {FLAG_OFF}
    s_cmp_lt_u32 s2, 32
    s_cselect_b32 s3, s3, {OOB}
    v_lshlrev_b32 v{T1}, 1, v{LANE}
    v_and_b32 v{T1}, 0x7c, v{T1}
    buffer_store_dword v{ACC}, v{T1}, s[8:11], s3 offen
    v_mov_b32 v{SUM}, 0
    v_mov_b32 v{SQ}, 0
    v_lshlrev_b32 v{T0}, 4, v{LANE}
    v_add_u32 v{T0}, {BIASA}, v{T0}
    """)
    for i in range(3):
        a(f"ds_write_b128 v{T0}, {vr(ACC,4)} offset:{i*1024}")
    for i in range(10):
        a(f"s_waitcnt vmcnt({9 - i + 3 + NPF + 1})")
        for e in range(4):
            a(f"v_dot2c_f32_bf16 v{SUM}, v{XS+4*i+e}, v{ONES}")
            a(f"v_dot2c_f32_bf16 v{SQ}, v{XS+4*i+e}, v{XS+4*i+e}")
    a(f"s_waitcnt vmcnt({NPF + 1})")
    for i in range(3):
        a(f"ds_write_b32 v{T0}, v{BI+i} offset:{i*1024}")
    for mod in ("quad_perm:[1,0,3,2]", "quad_perm:[2,3,0,1]", "row_half_mirror"):
        a(f"v_add_f32_dpp v{SUM}, v{SUM}, v{SUM} {mod} row_mask:0xf bank_mask:0xf")
        a(f"v_add_f32_dpp v{SQ}, v{SQ}, v{SQ} {mod} row_mask:0xf bank_mask:0xf")
        a("s_nop 0")
    a(f"""
    v_mul_f32 v{SUM}, {f32(1.0/D)}, v{SUM}
    v_mul_f32 v{SQ}, {f32(1.0/D)}, v{SQ}
    v_fma_f32 v{SQ}, -v{SUM}, v{SUM}, v{SQ}
    v_max_f32 v{SQ}, 0, v{SQ}
    v_cvt_pk_bf16_f32 v{SQ}, v{SQ}, v{SQ}
    v_and_b32 v{SQ}, 0xffff0000, v{SQ}
    v_add_f32 v{SQ}, {f32(1e-5)}, v{SQ}
    v_cvt_pk_bf16_f32 v{SQ}, v{SQ}, v{SQ}
    v_and_b32 v{SQ}, 0xffff0000, v{SQ}
    v_sqrt_f32 v{SQ}, v{SQ}
    v_lshrrev_b32 v{T0}, 3, v{LANE}
    v_lshlrev_b32 v{T0}, 2, v{T0}
    s_lshl_b32 s3, s{sRB}, 9
    s_lshl_b32 s60, s{sJ}, 5
    s_add_u32 s3, s3, s60
    s_add_u32 s3, s3, {STAT_OFF}
    v_cvt_pk_bf16_f32 v{T1}, -v{SUM}, v{SQ}
    s_mov_b32 exec_lo, 0x01010101
    s_mov_b32 exec_hi, 0x01010101
    buffer_store_dword v{T1}, v{T0}, s[8:11], s3 offen{SC}
    s_mov_b64 exec, -1
    s_waitcnt lgkmcnt(0)
    """)
    a(f"L_{name}_nb:")
    CS = 144
    for t in range(5): a(f"v_mov_b32 v{CS+t}, 0")
    a(f"s_cmp_eq_u32 s{sJ}, 15")
    a(f"s_cbranch_scc1 L_{name}_ckv")

    def compute_loop(tag, nt, stride, toff, ring):
        tr_addr(aW0, stride, 3)
        a(f"v_add_u32 v{aW0}, {WBASE}, v{aW0}")
        a(f"v_mov_b32 v{aW}, v{aW0}")
        lg = Cnt(a, "lgkmcnt", 15)
        def reads(ks):
            b = FR + (ks % 2) * 24
            r = [(f"ds_read_b128 {vr(b,4)}, v{aX+ks}", ("x", ks % 2))]
            for t in range(nt):
                for sec in range(2):
                    r.append((f"ds_read_b64_tr_b16 {vr(b+4+4*t+2*sec,2)}, v{aW} offset:{(16*ks+4*sec)*stride + toff[t]}", ("w", t, ks % 2)))
            return r
        stamp(1)
        a("s_barrier")
        stamp(2)
        for s, tg in reads(0): a(s)
        a(".p2align 6")
        a(f"L_{name}_{tag}loop:")
        lg.q = [tg for s, tg in reads(0)]
        for ks in range(4):
            b = FR + (ks % 2) * 24
            nx = reads((ks + 1) % 4)
            if nt == 5:
                first = 1 if ks == 3 else 0
                cnts = [0] * nt
                for i, c in enumerate((4, 4, 3)): cnts[first + i] = c
            else:
                first = 0; cnts = [len(nx)] + [0] * (nt - 1)
            k = 0
            for t in range(nt):
                lg.need(("x", ks % 2)); lg.need(("w", t, ks % 2))
                a(f"v_mfma_f32_32x32x16_bf16 {vr(ACC+16*t,16)}, {vr(b+4+4*t,4)}, {vr(b,4)}, {vr(ACC+16*t,16)}")
                if ks == 3 and t == 0:
                    a(f"s_add_u32 s{sSlotX}, s{sSlotX}, {XSLOT}")
                    a(f"s_and_b32 s{sSlotX}, s{sSlotX}, {4*XSLOT-1}")
                    if ring:
                        a(f"s_add_u32 s{sSlotW}, s{sSlotW}, {WSLOT}")
                        a(f"s_cmp_eq_u32 s{sSlotW}, {4*WSLOT}")
                        a(f"s_cselect_b32 s{sSlotW}, 0, s{sSlotW}")
                    else:
                        a(f"s_add_u32 s{sSlotW}, s{sSlotW}, {64*stride}")
                    a(f"v_add_u32 v{aX}, s{sSlotX}, v{aX0}")
                    a(f"v_add_u32 v{aW}, s{sSlotW}, v{aW0}")
                    a(f"s_add_u32 s{sCnt}, s{sCnt}, 1")
                if ks == 3 and t == first:
                    a(f"s_cmp_eq_u32 s{sCnt}, 10")
                    lg.drain()
                    a(f"s_cbranch_scc1 L_{name}_{tag}nobar")
                    a("s_barrier")
                    a(f"L_{name}_{tag}nobar:")
                for s, tg in nx[k:k + cnts[t]]:
                    a(s); lg.issue(tg)
                k += cnts[t]
                if ks == 3 and t == nt - 1:
                    for kk in range(1, 4): a(f"v_add_u32 v{aX+kk}, s{sSlotX}, v{aX0+kk}")
            if "nostats" not in X:
                a(f"s_cmp_lg_u32 s{sW}, {ks}")
                a(f"s_cbranch_scc1 L_{name}_{tag}nocs{ks}")
                for e in range(4):
                    for t in range(nt):
                        a(f"v_dot2c_f32_bf16 v{CS+t}, v{b+4+4*t+e}, v{ONES}")
                if ks == 0:
                    a(f"""
                    s_cmp_lg_u32 s{sCnt}, 1
                    s_cbranch_scc1 L_{name}_{tag}nocs{ks}
                    s_lshl_b32 s3, s{sRB}, 4
                    s_add_u32 s3, s3, s{sJ}
                    v_mov_b32 v{T0}, 0
                    v_mov_b32 v{T1}, 1
                    s_mov_b64 exec, 1
                    s_waitcnt vmcnt(0)
                    buffer_store_byte v{T1}, v{T0}, s[64:67], s3 offen{SC}
                    s_mov_b64 exec, -1
                    """)
                a(f"L_{name}_{tag}nocs{ks}:")
        a(f"s_cmp_lt_u32 s{sCnt}, 10")
        a(f"s_cbranch_scc1 L_{name}_{tag}loop")
        stamp(3)
        CF = FR + 24
        RS = 150
        TW = FR
        a("s_waitcnt lgkmcnt(0)")
        for t in range(nt): a(f"v_mov_b32 v{TW+t}, v{CS+t}")
        a(f"""
        v_and_b32 v{T0}, 31, v{LANE}
        s_lshl_b32 s3, s{sW}, 2
        s_add_u32 s3, s3, {CSA}
        v_lshl_add_u32 v{T3}, v{T0}, 4, s3
        """)
        for t in range(nt): a(f"v_permlane32_swap_b32 v{TW+t}, v{CS+t}")
        a(f"""
        v_lshlrev_b32 v{T1}, 4, v{T0}
        v_add_u32 v{T2}, {CSA}, v{T1}
        """)
        for t in range(nt): a(f"v_add_f32 v{CS+t}, v{CS+t}, v{TW+t}")
        for t in range(nt): a(f"v_and_b32 v{TW+t}, 0xffff0000, v{CS+t}")
        for t in range(nt): a(f"v_sub_f32 v{CS+t}, v{CS+t}, v{TW+t}")
        for t in range(nt): a(f"v_cvt_pk_bf16_f32 v{CS+t}, v{TW+t}, v{CS+t}")
        for t in range(nt): a(f"ds_write_b32 v{T3}, v{CS+t} offset:{t*512}")
        a(f"""
        v_add_u32 v{T1}, {BIASA}, v{T1}
        v_cndmask_b32 v{T1}, v{T2}, v{T1}, s[{sHI}:{sHI+1}]
        s_lshl_b32 s3, s{sW}, 7
        s_add_u32 s3, s3, {STATA}
        v_lshl_add_u32 v{T0}, v{T0}, 2, s3
        s_waitcnt lgkmcnt(0)
        s_barrier
        ds_read_b32 v{T3}, v{T0}
        """)
        for t in range(nt):
            a(f"ds_read_b128 {vr(CF+4+4*t,4)}, v{T1} offset:{t*512}")
        a(f"""
        s_waitcnt lgkmcnt({nt})
        v_and_b32 v{T0}, 0xffff, v{T3}
        v_lshl_or_b32 v{T0}, v{T0}, 16, v{T0}          ; (-mu,-mu)
        v_lshrrev_b32 v{T1}, 16, v{T3}                 ; (sigma, 0)
        v_and_b32 v{RS}, 0xffff0000, v{T3}
        v_rcp_f32 v{RS}, v{RS}
        v_cndmask_b32 v{CF}, v{T0}, v{T1}, s[{sHI}:{sHI+1}]
        v_cndmask_b32 v{CF+1}, v{T0}, 0, s[{sHI}:{sHI+1}]
        v_cndmask_b32 v{CF+2}, v{T0}, 0, s[{sHI}:{sHI+1}]
        v_cndmask_b32 v{CF+3}, v{T0}, 0, s[{sHI}:{sHI+1}]
        s_waitcnt lgkmcnt(0)
        s_nop 0
        """)
        for t in range(nt):
            a(f"v_mfma_f32_32x32x16_bf16 {vr(ACC+16*t,16)}, {vr(CF+4+4*t,4)}, {vr(CF,4)}, {vr(ACC+16*t,16)}")
        a(f"s_lshl_b32 s26, s{sRB}, 2")
        a(f"s_add_u32 s26, s26, s{sW}                  ; rt32")
        a("s_nop 9")
        stamp(4)
        return RS
    def scale(base, n, RS):
        for r in range(0, n, 2):
            a(f"v_pk_mul_f32 {vr(base+r,2)}, {vr(base+r,2)}, {vr(RS,2)} op_sel_hi:[1,0]")

    RS = compute_loop("c", 5, 320, [64 * t for t in range(5)], True)
    a(f"s_cmp_ge_u32 s{sJ}, 4")
    a(f"s_cbranch_scc1 L_{name}_eph")
    a(f"""
    v_mul_f32 v{RS}, {f32(QSCALE)}, v{RS}
    s_mul_i32 s26, s26, {QF_RT}
    s_mul_i32 s3, s{sJ}, {5*2048}
    s_add_u32 s26, s26, s3
    v_lshlrev_b32 v{T0}, 3, v{LANE}
    """)
    for t in range(5):
        scale(ACC+16*t, 16, RS)
        for r in range(8): a(f"v_cvt_pk_bf16_f32 v{ACC+16*t+r}, v{ACC+16*t+2*r}, v{ACC+16*t+2*r+1}")
        for i in range(4):
            a(f"buffer_store_dwordx2 {vr(ACC+16*t+2*i,2)}, v{T0}, s[8:11], s26 offen offset:{(t%2)*2048 + i*512}{ST}")
        if t % 2 == 1: a(f"s_add_u32 s26, s26, 4096")
    a(f"s_branch L_{name}_fin")
    a(f"L_{name}_eph:")
    a(f"""
    s_mul_i32 s26, s26, {AF_RT}
    s_sub_u32 s3, s{sJ}, 4
    s_mul_i32 s3, s3, {10*1024}
    s_add_u32 s26, s26, s3
    s_add_u32 s26, s26, {AF_OFF}
    v_lshlrev_b32 v{T0}, 4, v{LANE}
    """)
    for t in range(5):
        if t == 4:
            a(f"s_cmp_eq_u32 s{sJ}, 14")
            a(f"s_cbranch_scc1 L_{name}_fin")
        scale(ACC+16*t, 16, RS)
        for r in range(16): a(f"v_mul_f32_e64 v{ACC+16*t+r}, v{ACC+16*t+r}, |v{ACC+16*t+r}|")
        for r in range(8): a(f"v_cvt_pk_bf16_f32 v{ACC+16*t+r}, v{ACC+16*t+2*r}, v{ACC+16*t+2*r+1}")
        for r in range(8): a(f"v_pk_max_i16 v{ACC+16*t+r}, v{ACC+16*t+r}, 0")
        for i in range(2):
            a(f"buffer_store_dwordx4 {vr(ACC+16*t+4*i,4)}, v{T0}, s[8:11], s26 offen offset:{(t%2)*2048 + i*1024}{ST}")
        if t % 2 == 1: a(f"s_add_u32 s26, s26, 4096")
    a(f"s_branch L_{name}_fin")
    a(f"L_{name}_ckv:")
    RS = compute_loop("k", 2, 40, [0, KVW_V], False)
    Kt, Vt = ACC, ACC + 16
    a(f"""
    s_mul_i32 s26, s26, {KV_TILE}
    s_add_u32 s26, s26, {KV_OFF}
    v_lshlrev_b32 v{T0}, 4, v{LANE}
    v_lshlrev_b32 v{T1}, 3, v{LANE}
    v_bfe_u32 v{T3}, v{LANE}, 3, 2
    v_mul_u32_u24 v{T3}, {KV_VB}, v{T3}
    v_and_b32 v{aW}, 7, v{LANE}
    v_lshl_add_u32 v{T3}, v{aW}, 1, v{T3}
    v_lshrrev_b32 v{aW}, 5, v{LANE}
    v_lshl_add_u32 v{T3}, v{aW}, 6, v{T3}
    """)
    for r in range(12):
        a(f"v_mul_f32 v{Kt+r}, v{RS}, v{Kt+r}")
        a(f"v_mul_f32 v{Vt+r}, v{RS}, v{Vt+r}")
    a(f"v_cndmask_b32 v{Vt+8}, v{Vt+8}, 1.0, s[{sHI}:{sHI+1}]")
    a(f"v_cndmask_b32 v{Vt+9}, v{Vt+9}, 0, s[{sHI}:{sHI+1}]")
    for r in range(6):
        a(f"v_cvt_pk_bf16_f32 v{Kt+r}, v{Kt+2*r}, v{Kt+2*r+1}")
        a(f"v_cvt_pk_bf16_f32 v{Vt+r}, v{Vt+2*r}, v{Vt+2*r+1}")
    a(f"buffer_store_dwordx4 {vr(Kt,4)}, v{T0}, s[8:11], s26 offen")
    for r in range(6):
        i, e = r // 2, (r % 2) * 2
        if r == 5:
            a("s_mov_b32 exec_hi, 0")
            a(f"buffer_store_dwordx2 {vr(Kt+4,2)}, v{T1}, s[8:11], s26 offen offset:{KV_K2}")
        a(f"buffer_store_short v{Vt+r}, v{T3}, s[8:11], s26 offen offset:{KV_V + (8*i+e)*16}")
        a(f"buffer_store_short_d16_hi v{Vt+r}, v{T3}, s[8:11], s26 offen offset:{KV_V + (8*i+e+1)*16}")
    a(f"s_branch L_{name}_fin")

    a(f"L_{name}_loader:")
    vX, vW = 16, 20
    a(f"""
    v_lshrrev_b32 v{T0}, 3, v{LANE}             ; row_in
    v_and_b32 v{T1}, 7, v{LANE}
    v_lshrrev_b32 v{T2}, 4, v{LANE}
    v_xor_b32 v{T1}, v{T1}, v{T2}
    s_lshl_b32 s3, s{sLW}, 5
    v_add_u32 v{T0}, s3, v{T0}
    v_mul_u32_u24 v{T0}, 1280, v{T0}
    """)
    for i in range(4):
        a(f"v_xor_b32 v{T2}, {4*(i&1)}, v{T1}")
        a(f"v_lshl_add_u32 v{T2}, v{T2}, 4, v{T0}")
        a(f"v_add_u32 v{vX+i}, {i*(8*1280-1024)}, v{T2}")
    a(f"""
    s_mov_b32 s{sWo}, s{sCol}
    s_lshl_b32 s{sSlotX}, s{sLW}, 12
    s_mul_i32 s{sSlotW}, s{sLW}, 5120
    s_add_u32 s{sSlotW}, s{sSlotW}, {WBASE}
    """)
    a(f"s_lshl_b32 s3, s{sLW}, 4")
    for i in range(5):
        a(f"""
        v_add_u32 v{T0}, {64*i}, v{LANE}
        v_mul_u32_u24 v{T1}, 3277, v{T0}
        v_lshrrev_b32 v{T1}, 16, v{T1}
        v_mul_u32_u24 v{T2}, 20, v{T1}
        v_sub_u32 v{T2}, v{T0}, v{T2}
        v_add_u32 v{T1}, s3, v{T1}
        v_mul_lo_u32 v{T1}, v{T1}, s{sStride}
        v_lshl_add_u32 v{T1}, v{T2}, 4, v{T1}
        v_subrev_u32 v{vW+i}, {(i%4)*1024}, v{T1}
        """)
    a(f"""
    s_cmp_lt_u32 s{sJ}, 4
    s_waitcnt lgkmcnt(0)
    s_cselect_b32 s32, s46, s56
    s_cselect_b32 s33, s47, s57
    s_cmp_lt_u32 s{sLW}, 2
    s_cselect_b32 s26, s48, s50
    s_cselect_b32 s27, s49, s51
    s_cmp_eq_u32 s{sJ}, 15
    s_cselect_b32 s32, s26, s32
    s_cselect_b32 s33, s27, s33
    s_cselect_b32 s34, {D*DH*2}, s34
    """)
    common_srds()
    stamp(0)
    a(f"s_cmp_eq_u32 s{sJ}, 15")
    a(f"s_cbranch_scc1 L_{name}_lkv")

    def dma_list(ring):
        g = []
        g.append([f"s_mov_b32 m0, s{sSlotX}", f"s_add_u32 s{sSlotX}, s{sSlotX}, {XSLOT}",
                  f"buffer_load_dwordx4 v{vX}, s[28:31], s{sXo} offen lds"])
        for i in range(1, 4):
            g.append([f"buffer_load_dwordx4 v{vX+i}, s[28:31], s{sXo} offen offset:{i*1024} lds"])
        g[-1] += [f"s_and_b32 s{sSlotX}, s{sSlotX}, {4*XSLOT-1}", f"s_add_u32 s{sXo}, s{sXo}, 128"]
        if ring:
            g.append([f"s_mov_b32 m0, s{sSlotW}", f"s_add_u32 s3, s{sSlotW}, 4096",
                      f"buffer_load_dwordx4 v{vW}, s[32:35], s{sWo} offen lds"])
            for i in range(1, 4):
                g.append([f"buffer_load_dwordx4 v{vW+i}, s[32:35], s{sWo} offen offset:{i*1024} lds"])
            g.append([f"s_mov_b32 m0, s3", f"s_add_u32 s{sSlotW}, s{sSlotW}, {WSLOT}",
                      f"buffer_load_dwordx4 v{vW+4}, s[32:35], s{sWo} offen lds",
                      f"s_sub_u32 s3, s{sSlotW}, {4*WSLOT}", f"s_cmp_ge_u32 s{sSlotW}, {WBASE + 4*WSLOT}",
                      f"s_cselect_b32 s{sSlotW}, s3, s{sSlotW}", f"s_add_u32 s{sWo}, s{sWo}, s{sWstep}"])
        return g

    def loader(tag, ring):
        per = 9 if ring else 4
        def dma():
            if "nodma" in X: return
            for g in dma_list(ring):
                for s in g: a(s)
        dma()
        if not ring:
            a(f"""
            v_lshlrev_b32 v{vW}, 4, v{LANE}
            s_and_b32 s3, s{sLW}, 1
            s_mul_i32 s{sWo}, s3, {13*1024}
            s_mul_i32 s26, s{sLW}, {13*1024}
            s_add_u32 s26, s26, {WBASE}
            """)
            for i in range(13):
                if i % 4 == 0:
                    a(f"s_mov_b32 m0, s26")
                    a(f"s_add_u32 s26, s26, 4096")
                a(f"buffer_load_dwordx4 v{vW}, s[32:35], s{sWo} offen offset:{(i%4)*1024} lds")
                if i % 4 == 3: a(f"s_add_u32 s{sWo}, s{sWo}, 4096")
        dma()
        stamp(1)
        a(f"s_waitcnt vmcnt({per})")
        a("s_barrier")
        stamp(2)
        dma()
        a(f"L_{name}_{tag}loop:")
        dma()
        a(f"s_add_u32 s{sCnt}, s{sCnt}, 1")
        a(f"s_cmp_lt_u32 s{sCnt}, 7")
        a(f"s_waitcnt vmcnt({2*per})")
        a("s_barrier")
        a(f"s_cbranch_scc1 L_{name}_{tag}loop")
        a(f"s_cmp_eq_u32 s{sLW}, 0")
        a(f"s_cbranch_scc1 L_{name}_{tag}gather")
        a(f"s_waitcnt vmcnt({per})")
        a("s_barrier")
        a(f"s_waitcnt vmcnt(0)")
        a("s_barrier")
        stamp(3)
        a(f"s_branch L_{name}_fin")
        a(f"L_{name}_{tag}gather:")
        a(f"""
        s_lshl_b32 s26, s{sRB}, 4
        v_mov_b32 v{T0}, 0
        s_mov_b32 s27, 0
        buffer_load_dwordx4 v[28:31], v{T0}, s[64:67], s26 offen{SC}
        s_waitcnt vmcnt({per+1})
        s_barrier
        L_{name}_{tag}poll:
        s_waitcnt vmcnt(0)
        v_and_b32 v28, v28, v29
        v_and_b32 v30, v30, v31
        v_and_b32 v28, v28, v30
        s_add_u32 s27, s27, 1
        v_readfirstlane_b32 s3, v28
        s_cmp_gt_u32 s27, 0x40000
        s_cselect_b32 s3, 0x01010101, s3
        s_cmp_eq_u32 s3, 0x01010101
        s_cbranch_scc1 L_{name}_{tag}got
        buffer_load_dwordx4 v[28:31], v{T0}, s[64:67], s26 offen{SC}
        s_branch L_{name}_{tag}poll
        L_{name}_{tag}got:
        v_lshlrev_b32 v{T0}, 3, v{LANE}
        s_lshl_b32 s3, s{sRB}, 9
        s_add_u32 s3, s3, {STAT_OFF}
        buffer_load_dwordx2 v[28:29], v{T0}, s[8:11], s3 offen{SC}
        v_add_u32 v{T0}, {STATA}, v{T0}
        s_barrier
        s_waitcnt vmcnt(0)
        ds_write_b64 v{T0}, v[28:29]
        s_waitcnt lgkmcnt(0)
        """)
        stamp(3)
        a("s_barrier")
        a(f"s_branch L_{name}_fin")

    loader("l", True)
    a(f"L_{name}_lkv:")
    loader("m", False)

    a(f"L_{name}_fin:")
    if prof: prof_store(a, sW, 3, 16, base=68, n=6)
    a(f"L_{name}_end:")
    a("s_endpgm")
    return kernel_head(name) + a.text() + kernel_desc(name, NV, 96), f"; @launch kernel={name} grid=(256,1,1) block=(512,1,1) lds={G1_LDS}"
```

```python
from common import *
from gemm1 import Cnt

SLOT = 24576
STAGE_B = 8 * KV_TILE
FLAGS = 2 * SLOT
MERGE = FLAGS + 64
MERGE_W = 14 * 256
RED_ROW = 144
RED_TILE = 32 * RED_ROW
RED_WAVE = 5 * RED_TILE
K2_LDS = 4 * RED_WAVE
BIAS = 64.0
SC = " sc0 sc1"

def gen_k2(name="k2_kernel", prof=False, X=()):
    a = Asm()
    stamp = mk_stamp(a, prof)
    NV = 168
    sW, sKH, sRT32, sH0, sQ, sDsrc, sDm0, sMode, sCnt, sRB, sJ = 12, 13, 14, 15, 16, 17, 18, 19, 20, 21, 26
    sHI = 22
    LANE, vD = 4, 3
    T0, T1, T2, T3, T4, T5 = 5, 6, 7, 8, 9, 10
    a(f"""
    s_cmp_ge_u32 s2, 256
    s_cbranch_scc1 L_{name}_end
    s_load_dwordx2 s[4:5], s[0:1], {KA['ws']}
    s_load_dwordx2 s[36:37], s[0:1], {KA['x']}
    s_load_dwordx4 s[40:43], s[0:1], {KA['b2']}
    v_lshrrev_b32 v{T0}, 6, v0
    v_and_b32 v{LANE}, 63, v0
    s_and_b32 s6, s2, 7
    s_lshr_b32 s7, s2, 3
    v_readfirstlane_b32 s{sW}, v{T0}
    s_lshl_b32 s6, s6, 2
    s_lshr_b32 s3, s7, 3
    s_add_u32 s{sRB}, s6, s3
    s_and_b32 s{sJ}, s7, 7
    v_lshlrev_b32 v{vD}, 4, v{LANE}
    s_mov_b32 s{sMode}, 0
    s_cmp_ge_u32 s{sW}, 8
    s_cbranch_scc1 L_{name}_gemm
    """)
    SA, SB, OA, OB, NA, NB = 16, 32, 48, 64, 80, 96
    QA1, QA2, QB1, QB2 = 112, 116, 120, 124
    K1, V0, V1, K2 = 128, 132, 136, 118
    IDX, aK1, aK2, aV = 126, 127, 1, 2
    a(f"""
    s_lshr_b32 s{sKH}, s{sW}, 2
    s_and_b32 s3, s{sW}, 1
    s_lshl_b32 s{sRT32}, s{sRB}, 1
    s_add_u32 s{sRT32}, s{sRT32}, s3
    s_lshl_b32 s{sH0}, s{sJ}, 2
    s_and_b32 s3, s{sW}, 2
    s_add_u32 s{sH0}, s{sH0}, s3
    s_mul_i32 s{sQ}, s{sRT32}, {QF_RT}
    s_mul_i32 s3, s{sH0}, 1280
    s_add_u32 s{sQ}, s{sQ}, s3
    s_mov_b32 s{sHI}, 0
    s_mov_b32 s{sHI+1}, -1
    v_lshlrev_b32 v{T1}, 3, v{LANE}
    s_waitcnt lgkmcnt(0)
    """)
    srd(a, 8, 4, WS_SIZE)
    stamp(0)
    assert QF_OFF == 0
    a(f"""
    buffer_load_dwordx2 v[{QA1}:{QA1+1}], v{T1}, s[8:11], s{sQ} offen
    buffer_load_dwordx2 v[{QA1+2}:{QA1+3}], v{T1}, s[8:11], s{sQ} offen offset:512
    buffer_load_dwordx2 v[{QA2}:{QA2+1}], v{T1}, s[8:11], s{sQ} offen offset:1024
    buffer_load_dwordx2 v[{QB1}:{QB1+1}], v{T1}, s[8:11], s{sQ} offen offset:1280
    buffer_load_dwordx2 v[{QB1+2}:{QB1+3}], v{T1}, s[8:11], s{sQ} offen offset:1792
    buffer_load_dwordx2 v[{QB2}:{QB2+1}], v{T1}, s[8:11], s{sQ} offen offset:2304
    s_mul_i32 s3, s{sKH}, {4*KV_TILE}
    v_add_u32 v{aK1}, s3, v{vD}
    v_and_b32 v{T0}, 31, v{LANE}
    v_lshlrev_b32 v{aK2}, 3, v{T0}
    v_add_u32 v{aK2}, s3, v{aK2}
    v_min_u32 v{T2}, 21, v{T0}
    v_lshrrev_b32 v{T4}, 5, v{LANE}
    v_mov_b32 v{IDX}, 0xdddddddd
    v_lshlrev_b32 v{T2}, 4, v{T2}
    v_mul_u32_u24 v{T4}, {KV_VB}, v{T4}
    v_add3_u32 v{aV}, v{T2}, v{T4}, s3
    s_add_u32 s3, s3, {KV_V + 336 - KV_K2}
    v_mov_b32 v{T2}, s3
    v_cndmask_b32 v{aK2}, v{aK2}, v{T2}, s[{sHI}:{sHI+1}]
    """)
    def rdK(slot, i, k1=K1, k2=K2):
        o = slot * SLOT + i * KV_TILE
        return [f"ds_read_b128 {vr(k1,4)}, v{aK1} offset:{o}", f"ds_read_b64 {vr(k2,2)}, v{aK2} offset:{o+KV_K2}"]
    def rdV(slot, i, s):
        o = slot * SLOT + i * KV_TILE + KV_V + s * 2 * KV_VB
        return [f"ds_read_b128 {vr(V1 if s else V0,4)}, v{aV} offset:{o}"]
    def qk(d, q1, q2, c, k1=K1, k2=K2):
        return [f"v_mfma_f32_32x32x16_bf16 {vr(d,16)}, {vr(k1,4)}, {vr(q1,4)}, {c}",
                f"v_mfma_f32_32x32x8_bf16 {vr(d,16)}, {vr(k2,2)}, {vr(q2,2)}, {vr(d,16)}"]
    def maxtree(m, d, first):
        if first:
            a(f"v_max3_f32 v{m}, v{d}, v{d+1}, v{d+2}")
            a(f"v_max_f32 v{m}, v{m}, v{d+3}")
            r = range(4, 16, 2)
        else:
            r = range(0, 16, 2)
        for i in r:
            a(f"v_max3_f32 v{m}, v{m}, v{d+i}, v{d+i+1}")
    def finish_max(m, N, bias):
        a(f"v_mov_b32 v{T2}, v{m}")
        a("s_nop 1")
        a(f"v_permlane32_swap_b32 v{m}, v{T2}")
        a("s_nop 1")
        a(f"v_max_f32 v{m}, v{m}, v{T2}")
        a(f"v_sub_f32 v{N}, {f32(-bias)}, v{m}")
        for i in range(1, 16):
            a(f"v_mov_b32 v{N+i}, v{N}")
    a(f"L_{name}_start:")
    for i in range(16):
        a(f"v_mov_b32 v{OA+i}, 0"); a(f"v_mov_b32 v{OB+i}, 0")
    a(f"""
    s_waitcnt vmcnt(0)
    s_barrier
    s_cmp_lg_u32 s{sMode}, 0
    s_cbranch_scc1 L_{name}_init
    """)
    for s in rdK(0, 0) + rdK(0, 1, V0, V1): a(s)
    a(f"""
    s_mov_b64 exec, s[{sHI}:{sHI+1}]
    v_mov_b32 v{QA2}, 0
    v_mov_b32 v{QA2+1}, 0
    v_mov_b32 v{QB2}, 0
    v_mov_b32 v{QB2+1}, 0
    s_mov_b64 exec, -1
    """)
    a("s_waitcnt lgkmcnt(2)")
    for s in qk(SA, QA1, QA2, "0") + qk(SB, QB1, QB2, "0"): a(s)
    a("s_waitcnt lgkmcnt(0)")
    for s in qk(NA, QA1, QA2, "0", V0, V1) + qk(NB, QB1, QB2, "0", V0, V1): a(s)
    a("s_nop 7")
    maxtree(T0, SA, True); maxtree(T1, SB, True)
    a("s_nop 3")
    maxtree(T0, NA, False); maxtree(T1, NB, False)
    finish_max(T0, NA, BIAS); finish_max(T1, NB, BIAS)
    a(f"L_{name}_init:")
    for s in rdK(0, 0) + rdV(0, 0, 0): a(s)
    for i in range(8, 16): a(f"v_mov_b32 v{SB+i}, 0")
    for i in range(4): a(f"v_mov_b32 v{V1+i}, 0")
    a("s_waitcnt lgkmcnt(0)")
    for s in qk(SA, QA1, QA2, vr(NA, 16)): a(s)
    a(f"s_mov_b32 s{sCnt}, 0")
    a("s_nop 15")

    def unit(cur, nxt, Onow, Oprev, q1, q2, nm, pre_pv2=(), post_pv2=(), pre_qk=(), post_qk=(), pre_pv1=(), post_pv1=()):
        e = lambda i: a(f"v_exp_f32 v{cur+i}, v{cur+i}")
        e(0); e(1)
        for s in pre_pv2: a(s)
        a(f"v_smfmac_f32_32x32x32_bf16 {vr(Oprev,16)}, {vr(V1,4)}, {vr(nxt+8,8)}, v{IDX}")
        for s in post_pv2: a(s)
        e(2); e(3); e(4)
        for s in pre_qk: a(s)
        m = qk(nxt, q1, q2, vr(nm, 16))
        a(m[0])
        e(5); e(6); e(7)
        a(m[1])
        for s in post_qk: a(s)
        e(8); e(9); e(10); e(11)
        for s in pre_pv1: a(s)
        a(f"v_smfmac_f32_32x32x32_bf16 {vr(Onow,16)}, {vr(V0,4)}, {vr(cur,8)}, v{IDX}")
        for s in post_pv1: a(s)
        e(12); e(13); e(14); e(15)

    stamp(1)
    a(".p2align 6")
    a(f"L_{name}_loop:")
    for slot in range(2):
        for i in range(4):
            ns, ni = (slot, i + 1) if i < 3 else (1 - slot, 0)
            post = rdK(ns, ni)
            if i == 3:
                post = ["s_waitcnt lgkmcnt(0)", "s_barrier"] + post
            unit(SA, SB, OA, OB, QB1, QB2, NB,
                 post_pv2=rdV(slot, i, 1), post_qk=post, pre_pv1=["s_waitcnt lgkmcnt(3)"] if i < 3 else [])
            unit(SB, SA, OB, OA, QA1, QA2, NA,
                 pre_pv2=["s_waitcnt lgkmcnt(2)"], pre_qk=["s_waitcnt lgkmcnt(0)"], post_pv1=rdV(ns, ni, 0))
    a(f"""
    s_add_u32 s{sCnt}, s{sCnt}, 1
    s_cmp_lt_u32 s{sCnt}, 4
    s_cbranch_scc1 L_{name}_loop
    s_nop 0
    v_smfmac_f32_32x32x32_bf16 {vr(OB,16)}, {vr(V1,4)}, {vr(SB+8,8)}, v{IDX}
    s_waitcnt lgkmcnt(0)
    s_nop 3
    """)
    stamp(2)
    vBad = T5
    a(f"v_mov_b32 v{vBad}, 0")
    for O in (OA, OB):
        a(f"v_mov_b32 v{O+12}, v{O+8}")
        a(f"v_mov_b32 v{O+13}, v{O+8}")
        a(f"v_mul_f32 v{T0}, 0, v{O}")
        a(f"v_max3_f32 v{T1}, |v{O}|, |v{O+1}|, |v{O+2}|")
        a(f"v_permlane32_swap_b32 v{O+13}, v{O+12}")
        for i in range(1, 12):
            a(f"v_fma_f32 v{T0}, v{O+i}, 0, v{T0}")
        a(f"v_max3_f32 v{T1}, v{T1}, |v{O+3}|, |v{O+4}|")
        a(f"v_max3_f32 v{T1}, v{T1}, |v{O+5}|, |v{O+6}|")
        a(f"v_max_f32_e64 v{T1}, v{T1}, |v{O+7}|")
        a(f"v_cmp_neq_f32 vcc, 0, v{T0}")
        a(f"s_mov_b64 s[24:25], vcc")
        a(f"v_cmp_ngt_f32 vcc, {f32(2.0**120)}, v{O+12}")
        a(f"s_or_b64 s[24:25], s[24:25], vcc")
        a(f"v_cmp_gt_f32 vcc, {f32(2.0**-100)}, v{T1}")
        a(f"s_or_b64 s[24:25], s[24:25], vcc")
        a(f"s_cmp_lg_u64 s[24:25], 0")
        a(f"s_cselect_b32 s3, 1, 0")
        a(f"v_or_b32 v{vBad}, s3, v{vBad}")
    a(f"s_cmp_eq_u32 s{sKH}, 0")
    a(f"s_cbranch_scc1 L_{name}_noswap")
    for i in range(13):
        a(f"v_swap_b32 v{OA+i}, v{OB+i}")
    a(f"v_swap_b32 v{NA}, v{NB}")
    a(f"s_add_u32 s{sH0}, s{sH0}, 1")
    a(f"L_{name}_noswap:")
    def read_flags(base, tz):
        a(f"""
        ds_read_b128 {vr(base,4)}, v{tz} offset:{FLAGS}
        ds_read_b128 {vr(base+4,4)}, v{tz} offset:{FLAGS+16}
        """)
    def test_flags(base, target):
        a(f"""
        v_or3_b32 v{base}, v{base}, v{base+1}, v{base+2}
        v_or3_b32 v{base}, v{base}, v{base+3}, v{base+4}
        v_or3_b32 v{base}, v{base}, v{base+5}, v{base+6}
        v_or_b32 v{base}, v{base}, v{base+7}
        s_nop 1
        v_readfirstlane_b32 s3, v{base}
        s_nop 1
        s_andn2_b32 s3, s3, s{sMode}
        s_cmp_lg_u32 s3, 0
        s_cbranch_scc1 {target}
        """)
    a(f"""
    v_mov_b32 v{OB+13}, v{NB}
    s_mul_i32 s3, s{sW}, {MERGE_W}
    s_xor_b32 s27, s{sW}, 4
    s_mul_i32 s27, s27, {MERGE_W}
    v_add_u32 v{T0}, s3, v{vD}
    v_add_u32 v{T1}, s27, v{vD}
    v_lshlrev_b32 v{T2}, 3, v{LANE}
    v_add_u32 v{T3}, s27, v{T2}
    v_add_u32 v{T2}, s3, v{T2}
    s_lshl_b32 s3, s{sW}, 2
    v_mov_b32 v{T4}, s3
    ds_write_b128 v{T0}, {vr(OB,4)} offset:{MERGE}
    ds_write_b128 v{T0}, {vr(OB+4,4)} offset:{MERGE+1024}
    ds_write_b128 v{T0}, {vr(OB+8,4)} offset:{MERGE+2048}
    ds_write_b64 v{T2}, {vr(OB+12,2)} offset:{MERGE+3072}
    ds_write_b32 v{T4}, v{vBad} offset:{FLAGS}
    v_mov_b32 v{T4}, 0
    s_waitcnt lgkmcnt(0)
    s_barrier
    """)
    read_flags(SA, T4)
    a(f"""
    ds_read_b64 {vr(OB+12,2)}, v{T3} offset:{MERGE+3072}
    ds_read_b128 {vr(OB,4)}, v{T1} offset:{MERGE}
    ds_read_b128 {vr(OB+4,4)}, v{T1} offset:{MERGE+1024}
    ds_read_b128 {vr(OB+8,4)}, v{T1} offset:{MERGE+2048}
    v_log_f32 v{T0}, v{OA+12}
    s_waitcnt lgkmcnt(4)
    """)
    test_flags(SA, f"L_{name}_exact")
    a(f"""
    s_waitcnt lgkmcnt(3)
    v_log_f32 v{T1}, v{OB+12}
    v_sub_f32 v{T0}, v{T0}, v{NA}
    v_sub_f32 v{T1}, v{T1}, v{OB+13}
    v_max_f32 v{T0}, v{T0}, v{T1}
    v_add_f32 v{T1}, v{T0}, v{OB+13}
    v_add_f32 v{T0}, v{T0}, v{NA}
    v_exp_f32_e64 v{T0}, -v{T0}
    v_exp_f32_e64 v{T1}, -v{T1}
    s_mul_i32 s3, s{sH0}, 5
    v_mul_f32 v{T2}, v{T0}, v{OA+12}
    v_fmac_f32 v{T2}, v{T1}, v{OB+12}
    v_rcp_f32 v{T2}, v{T2}
    s_mul_i32 s27, s{sRT32}, {AF_RT}
    v_mul_f32 v{T0}, v{T0}, v{T2}
    v_mul_f32 v{T1}, v{T1}, v{T2}
    s_add_u32 s27, s27, {AF_OFF + 108*1024}
    v_lshrrev_b32 v{T3}, 5, v{LANE}
    v_add_u32 v{T3}, s3, v{T3}
    v_and_b32 v{T4}, 31, v{LANE}
    v_lshlrev_b32 v{T4}, 4, v{T4}
    s_waitcnt lgkmcnt(0)
    """)
    for i in range(3):
        for e in range(4):
            a(f"v_mul_f32 v{OA+4*i+e}, v{T0}, v{OA+4*i+e}")
            a(f"v_fmac_f32 v{OA+4*i+e}, v{T1}, v{OB+4*i+e}")
        a(f"""
        v_cvt_pk_bf16_f32 v{SA+2*i}, v{OA+4*i}, v{OA+4*i+1}
        v_cvt_pk_bf16_f32 v{SA+2*i+1}, v{OA+4*i+2}, v{OA+4*i+3}
        v_lshrrev_b32 v{SB}, 2, v{T3}
        v_lshl_add_u32 v{SB}, v{SB}, 10, v{T4}
        v_and_b32 v{T2}, 1, v{T3}
        v_lshl_add_u32 v{SB}, v{T2}, 9, v{SB}
        v_and_b32 v{T2}, 2, v{T3}
        v_lshl_add_u32 v{SB}, v{T2}, 2, v{SB}
        """)
        if i == 2:
            a("s_mov_b32 exec_hi, 0")
        a(f"buffer_store_dwordx2 {vr(SA+2*i,2)}, v{SB}, s[8:11], s27 offen{SC}")
        a(f"v_add_u32 v{T3}, 2, v{T3}")
    a("s_waitcnt vmcnt(0)")
    stamp(3)
    a("s_barrier")
    a(f"s_branch L_{name}_fin")
    a(f"L_{name}_exact:")
    a(f"s_sub_u32 s{sH0}, s{sH0}, s{sKH}")
    a(f"s_mov_b32 s{sMode}, 1")
    a(f"s_mov_b32 s{sCnt}, 0")
    a(f"v_mov_b32 v{T0}, 0xff800000")
    a(f"v_mov_b32 v{T1}, 0xff800000")
    a(f"L_{name}_exloop:")
    a("s_waitcnt lgkmcnt(0)")
    a("s_barrier")
    a("s_barrier")
    for i in range(4):
        for s in rdK(0, i): a(s)
        a("s_waitcnt lgkmcnt(0)")
        for s in qk(SA, QA1, QA2, "0") + qk(SB, QB1, QB2, "0"): a(s)
        a("s_nop 15")
        maxtree(T0, SA, False); maxtree(T1, SB, False)
    a(f"""
    s_add_u32 s{sCnt}, s{sCnt}, 1
    s_cmp_lt_u32 s{sCnt}, 8
    s_cbranch_scc1 L_{name}_exloop
    """)
    finish_max(T0, NA, 0.0); finish_max(T1, NB, 0.0)
    a("s_barrier")
    a(f"s_branch L_{name}_start")

    a(f"L_{name}_gemm:")
    ACC, BUF = 8, 88
    G0, G1, G2 = 1, 2, 5
    sG = 13
    sB = [28, 29, 30, 31, 32]
    sRH, sCA, sCB, sCH = 14, 15, 16, 27
    a(f"""
    s_setprio {0 if "noprio" in X else 2}
    s_sub_u32 s{sG}, s{sW}, 8
    s_and_b32 s{sRH}, s{sJ}, 1
    s_lshr_b32 s3, s{sJ}, 1
    s_mul_i32 s3, s3, 5
    s_add_u32 s{sCH}, s3, 2
    s_mul_i32 s6, s{sRH}, 3
    s_add_u32 s{sCA}, s3, s6
    s_add_u32 s{sCB}, s{sCA}, 1
    s_mul_i32 s7, s{sG}, {27*1024}
    s_lshl_b32 s3, s{sRB}, 1
    s_add_u32 s6, s3, s{sRH}
    s_mul_i32 s{sB[0]}, s6, {AF_RT}
    s_xor_b32 s6, s6, 1
    s_mul_i32 s{sB[1]}, s6, {AF_RT}
    s_mul_i32 s{sB[2]}, s{sCA}, {WF_CT}
    s_mul_i32 s{sB[3]}, s{sCB}, {WF_CT}
    s_mul_i32 s{sB[4]}, s{sCH}, {WF_CT}
    s_add_u32 s3, s7, {AF_OFF}
    s_add_u32 s{sB[0]}, s{sB[0]}, s3
    s_add_u32 s{sB[1]}, s{sB[1]}, s3
    s_add_u32 s3, s7, {WF_OFF}
    s_add_u32 s{sB[2]}, s{sB[2]}, s3
    s_add_u32 s{sB[3]}, s{sB[3]}, s3
    s_add_u32 s{sB[4]}, s{sB[4]}, s3
    s_mul_i32 s{sDm0}, s{sG}, 6144
    s_add_u32 s{sDsrc}, s{sDm0}, {KV_OFF}
    s_mul_i32 s33, s{sG}, {17*1024}
    s_waitcnt lgkmcnt(0)
    """)
    srd(a, 8, 4, WS_SIZE)
    srd(a, 44, 36, S * D * 2)
    srd(a, 48, 40, D * 2)
    srd(a, 52, 42, S * D * 2)
    stamp(0)
    vm = Cnt(a, "vmcnt", 63)
    def dma(slot, tag=None):
        a(f"s_add_u32 m0, s{sDm0}, {slot*SLOT}")
        a(f"s_add_u32 s3, s{sDsrc}, 4096")
        for n in range(4):
            a(f"buffer_load_dwordx4 v{vD}, s[8:11], s{sDsrc} offen offset:{n*1024} lds"); vm.issue(tag)
        a(f"s_add_u32 m0, s{sDm0}, {slot*SLOT + 4096}")
        a(f"s_add_u32 s{sDsrc}, s{sDsrc}, {STAGE_B}")
        for n in range(2):
            a(f"buffer_load_dwordx4 v{vD}, s[8:11], s3 offen offset:{n*1024} lds"); vm.issue(tag)
    NK1, NK2, DEP = 27, 10, 4
    basek = [0] * 5
    def load1(i, ks):
        if ks >= NK1: loc = ks - NK1 + 1000
        else: loc = ks
        if loc >= 1000 and basek[i] < 1000:
            a(f"s_sub_u32 s{sB[i]}, s{sB[i]}, s33")
            a(f"s_add_u32 s{sB[i]}, s{sB[i]}, {(108 - basek[i]) * 1024}")
            basek[i] = 1000
        if loc - basek[i] >= 4:
            a(f"s_add_u32 s{sB[i]}, s{sB[i]}, 4096"); basek[i] += 4
        b = BUF + (ks % DEP) * 20
        sc = SC if (ks >= NK1 and i < 2) else ""
        a(f"buffer_load_dwordx4 {vr(b+4*i,4)}, v{vD}, s[8:11], s{sB[i]} offen offset:{(loc-basek[i])*1024}{sc}")
        vm.issue(("f", ks))
    def load(ks, which=range(5)):
        for i in which: load1(i, ks)
    def mfmas(ks):
        vm.need(("f", ks))
        b = BUF + (ks % DEP) * 20
        rH, rO, cA, cB, cH = [vr(b + 4 * i, 4) for i in range(5)]
        for t, (w, x) in enumerate([(cA, rH), (cA, rO), (cB, rH), (cB, rO), (cH, rH)]):
            a(f"v_mfma_f32_32x32x16_bf16 {vr(ACC+16*t,16)}, {w}, {x}, {vr(ACC+16*t,16)}")
            if "sleep" in X and ks < NK1: a("s_sleep 1")
    dma(0, ("kv", 0))
    for i in range(80): a(f"v_mov_b32 v{ACC+i}, 0")
    vm.need(("kv", 0))
    a("s_barrier")
    stamp(1)
    dma(1, ("kv", 1))
    for ks in range(DEP): load(ks)
    chunks = [4, 4, 4, 4, 4, 4, 3, 0]
    ks = 0
    for st in range(8):
        for _ in range(chunks[st]):
            if "nogemm" not in X: mfmas(ks)
            else: vm.need(("f", ks))
            nk = ks + DEP
            load(nk, range(5) if nk < NK1 else range(2, 5))
            ks += 1
        vm.need(("kv", st + 1))
        a("s_barrier")
        if st + 2 < 8: dma(st % 2, ("kv", st + 2))
    assert ks == NK1
    stamp(2)
    a(f"L_{name}_gmerge:")
    a(f"v_mov_b32 v{G0}, 0")
    a("s_barrier")
    FB = BUF + 3 * 20
    read_flags(FB, G0)
    a("s_waitcnt lgkmcnt(0)")
    test_flags(FB, f"L_{name}_gexact")
    a("s_barrier")
    a(f"""
    s_lshl_b32 s34, s{sRB}, 7
    s_add_u32 s34, s34, {FLAG_OFF}
    s_cmp_lg_u32 s{sG}, 0
    s_cbranch_scc1 L_{name}_poll0
    s_lshl_b32 s3, s{sJ}, 2
    v_mov_b32 v{G0}, s3
    v_mov_b32 v{G1}, 1
    s_mov_b64 exec, 1
    buffer_store_dword v{G1}, v{G0}, s[8:11], s34 offen{SC}
    s_mov_b64 exec, -1
    L_{name}_poll0:
    s_lshl_b32 s3, s{sG}, 3
    v_mov_b32 v{G0}, s3
    s_mov_b32 s35, 0
    L_{name}_poll:
    buffer_load_dwordx2 v[6:7], v{G0}, s[8:11], s34 offen{SC}
    s_add_u32 s35, s35, 1
    s_waitcnt vmcnt(0)
    v_and_b32 v6, v6, v7
    s_nop 0
    v_readfirstlane_b32 s3, v6
    s_cmp_gt_u32 s35, 0x40000
    s_cselect_b32 s3, 1, s3
    s_cmp_eq_u32 s3, 1
    s_cbranch_scc0 L_{name}_poll
    """)
    vm.q = []
    stamp(3)
    for k in range(NK1, NK1 + DEP): load(k, range(2))
    E0, E1, E2, E3 = 1, 2, 5, 6
    for k in range(NK1, NK1 + NK2):
        mfmas(k)
        if k + DEP < NK1 + NK2: load(k + DEP)
    stamp(4)
    a(f"""
    v_and_b32 v{E0}, 31, v{LANE}
    v_mul_u32_u24 v{E0}, {RED_ROW}, v{E0}
    v_lshrrev_b32 v{E1}, 5, v{LANE}
    v_lshl_add_u32 v{E0}, v{E1}, 4, v{E0}
    s_mul_i32 s3, s{sG}, {RED_WAVE}
    v_add_u32 v{E0}, s3, v{E0}
    v_subrev_u32 v0, 512, v0
    v_lshrrev_b32 v{E1}, 3, v0
    v_and_b32 v{E2}, 7, v0
    v_mul_u32_u24 v7, {RED_ROW}, v{E1}
    v_lshl_add_u32 v7, v{E2}, 4, v7
    v_add_u32 v{E3}, {2*RED_WAVE}, v7
    v_mul_u32_u24 v{E1}, 1280, v{E1}
    v_lshlrev_b32 v{E2}, 3, v{E2}
    v_add_u32 v{E1}, v{E1}, v{E2}
    s_lshl_b32 s3, s{sRB}, 1
    s_add_u32 s6, s3, s{sRH}
    s_mul_i32 s34, s6, {32*1280}
    s_xor_b32 s6, s6, 1
    s_mul_i32 s35, s6, {32*1280}
    s_lshl_b32 s{sCA}, s{sCA}, 6
    s_lshl_b32 s{sCB}, s{sCB}, 6
    s_lshl_b32 s{sCH}, s{sCH}, 6
    """)
    tl = [(34, sCA), (35, sCA), (34, sCB), (35, sCB), (34, sCH)]
    XB = BUF
    for t, (r, c) in enumerate(tl):
        a(f"s_add_u32 s{56+t}, s{r}, s{c}")
        a(f"buffer_load_dwordx2 {vr(XB+4*t,2)}, v{E1}, s[44:47], s{56+t} offen")
        a(f"buffer_load_dwordx2 {vr(XB+4*t+2,2)}, v{E2}, s[48:51], s{c} offen")
    for t in range(5):
        for i in range(4):
            a(f"ds_write_b128 v{E0}, {vr(ACC+16*t+4*i,4)} offset:{t*RED_TILE + i*32}")
    a("s_waitcnt lgkmcnt(0)")
    a("s_barrier")
    P = ACC
    for t in range(5):
        for w in range(4):
            a(f"ds_read_b128 {vr(P+16*t+4*w,4)}, v{7 if w < 2 else E3} offset:{(w%2)*RED_WAVE + t*RED_TILE}")
    a("s_waitcnt vmcnt(0)")
    U = BUF + 24
    for t in range(5):
        a(f"s_waitcnt lgkmcnt({min(15, (4-t)*4)})")
        p = P + 16 * t
        x0, b0 = XB + 4 * t, XB + 4 * t + 2
        for e in range(4):
            a(f"v_add_f32 v{p+e}, v{p+e}, v{p+4+e}")
            a(f"v_add_f32 v{p+8+e}, v{p+8+e}, v{p+12+e}")
        for e in range(4):
            a(f"v_add_f32 v{p+e}, v{p+e}, v{p+8+e}")
        for base in (x0, b0):
            for e in range(4):
                src = base + e // 2
                if e % 2 == 0: a(f"v_lshlrev_b32 v{U}, 16, v{src}")
                else: a(f"v_and_b32 v{U}, 0xffff0000, v{src}")
                a(f"v_add_f32 v{p+e}, v{p+e}, v{U}")
        a(f"v_cvt_pk_bf16_f32 v{p}, v{p}, v{p+1}")
        a(f"v_cvt_pk_bf16_f32 v{p+1}, v{p+2}, v{p+3}")
        a(f"buffer_store_dwordx2 {vr(p,2)}, v{E1}, s[52:55], s{56+t} offen")
    a(f"s_branch L_{name}_fin")
    a(f"L_{name}_gexact:")
    a(f"""
    s_mov_b32 s{sMode}, 1
    s_mov_b32 s{sCnt}, 0
    s_add_u32 s{sDsrc}, s{sDm0}, {KV_OFF}
    L_{name}_gex1:
    s_barrier
    """)
    dma(0)
    a(f"""
    s_waitcnt vmcnt(0)
    s_barrier
    s_add_u32 s{sCnt}, s{sCnt}, 1
    s_cmp_lt_u32 s{sCnt}, 8
    s_cbranch_scc1 L_{name}_gex1
    s_barrier
    s_add_u32 s{sDsrc}, s{sDm0}, {KV_OFF}
    """)
    dma(0); dma(1)
    a(f"""
    s_waitcnt vmcnt(0)
    s_barrier
    s_mov_b32 s{sCnt}, 0
    L_{name}_gex2:
    """)
    for slot in range(2):
        a("s_waitcnt vmcnt(0)")
        a("s_barrier")
        a(f"s_cmp_eq_u32 s{sCnt}, 3")
        a(f"s_cbranch_scc1 L_{name}_gex3_{slot}")
        dma(slot)
        a(f"L_{name}_gex3_{slot}:")
    a(f"""
    s_add_u32 s{sCnt}, s{sCnt}, 1
    s_cmp_lt_u32 s{sCnt}, 4
    s_cbranch_scc1 L_{name}_gex2
    s_branch L_{name}_gmerge
    """)
    a(f"L_{name}_fin:")
    if prof: prof_store(a, sW, 4, 16, n=6)
    a(f"L_{name}_end:")
    a("s_endpgm")
    return kernel_head(name) + a.text() + kernel_desc(name, NV, 96), f"; @launch kernel={name} grid=(256,1,1) block=(768,1,1) lds={K2_LDS}"
```

```python
from build import *
def k(name, nkb, mode):
    a = Asm(); stamp = mk_stamp(a, True)
    a(f"""
    s_load_dwordx2 s[4:5], s[0:1], {KA['ws']}
    v_lshrrev_b32 v2, 6, v0
    v_and_b32 v1, 63, v0
    s_nop 0
    v_readfirstlane_b32 s12, v2
    v_lshlrev_b32 v3, {7 if mode==3 else 4}, v1
    s_waitcnt lgkmcnt(0)
    """)
    srd(a, 8, 4, WS_SIZE)
    if mode == 0: a("s_mov_b32 s13, 0")
    elif mode in (1, 3): a(f"s_mul_i32 s13, s2, {nkb*1024}")
    else:
        a("s_and_b32 s13, s2, 7"); a("s_lshr_b32 s3, s2, 6"); a("s_lshl_b32 s13, s13, 2"); a("s_add_u32 s13, s13, s3"); a(f"s_mul_i32 s13, s13, {nkb*1024}")
    a(f"s_mul_i32 s3, s12, {nkb*256}")
    a("s_add_u32 s13, s13, s3")
    stamp(0)
    n = nkb // 4 if mode != 3 else max(nkb // 32, 1)
    for i in range(n):
        if mode == 3:
            a(f"buffer_load_dword v{16+i}, v3, s[8:11], s13 offen"); a("s_add_u32 s13, s13, 8192")
        else:
            a(f"buffer_load_dwordx4 {vr(16+4*(i%16),4)}, v3, s[8:11], s13 offen"); a("s_add_u32 s13, s13, 1024")
        if i == 0: pass
    stamp(1)
    a(f"s_waitcnt vmcnt({n-1})")
    stamp(2)
    prof_store(a, 12, 2, 16, n=4)
    a("s_endpgm")
    return kernel_head(name) + a.text() + kernel_desc(name, 96, 96), f"; @launch kernel={name} grid=(256,1,1) block=(256,1,1) lds=0"
for nkb in (4, 40):
    for mode in (0, 1, 2):
        build(f"cb_{nkb}_{mode}.s", [k("cb_kernel", nkb, mode)])
build(f"cb_32_3.s", [k("cb_kernel", 32, 3)])
```
